```python
import torch

def _softmax(x, axis=-1):
    return torch.softmax(x, dim=axis)
def _gelu(x):
    return torch.nn.functional.gelu(x, approximate="tanh")
def _silu(x):
    return torch.nn.functional.silu(x)
def _sigmoid(x):
    return torch.sigmoid(x)
def _layernorm(x, axis=-1, eps=1e-5):
    m = x.mean(dim=axis, keepdim=True)
    v = x.var(dim=axis, keepdim=True, unbiased=False)
    return (x - m) / torch.sqrt(v + eps)
def _scatter_add(tgt, idx, src, axis=0):
    return tgt.clone().index_add_(axis, idx, src)
def _segment_sum(src, seg, n):
    out = torch.zeros((n,) + src.shape[1:], dtype=src.dtype)
    return out.index_add_(0, seg, src)
def _pad(x, pw):
    flat = tuple(v for pair in reversed(pw) for v in pair)
    return torch.nn.functional.pad(x, flat)

kernel_name = 'interleave_layers__linear_kernel_hedgehog__glu_gated_glu__prompt'

def setup_inputs():

    _w = (lambda a: (lambda t: t.to(torch.bfloat16) if t.is_floating_point() else t)(torch.as_tensor(a)))
    def _A_setup():
        B, S, D, H = 1, 2048, 448, 16
        Dh = D // H
        return {
            "x": _w((lambda *s: torch.randn(*s, dtype=torch.bfloat16) * 0.05)(B, S, D)),
            "wqkv": _w((lambda *s: torch.randn(*s, dtype=torch.bfloat16) * 0.4)(D, 3 * D)),
            "w_phi": _w((lambda *s: torch.randn(*s, dtype=torch.bfloat16) * 0.4)(H, Dh, Dh) * (Dh ** -0.5)),
            "wo": _w((lambda *s: torch.randn(*s, dtype=torch.bfloat16) * 0.05)(D, D)),
        }
    _A_in = _A_setup()

    def _B_setup():
        B, S, D, F = 1, 2048, 448, 1792
        return {
            "x": _w((lambda *s: torch.randn(*s, dtype=torch.bfloat16) * 0.05)(B, S, D)),
            "w_gate": _w((lambda *s: torch.randn(*s, dtype=torch.bfloat16) * 0.05)(D, F)),
            "w_up": _w((lambda *s: torch.randn(*s, dtype=torch.bfloat16) * 0.05)(D, F)),
            "w_down": _w((lambda *s: torch.randn(*s, dtype=torch.bfloat16) * 0.05)(F, D)),
        }
    _B_in = _B_setup()

    return {
        "A_x": _A_in["x"],
        "A_wqkv": _A_in["wqkv"],
        "A_w_phi": _A_in["w_phi"],
        "A_wo": _A_in["wo"],
        "B_x": _B_in["x"],
        "B_w_gate": _B_in["w_gate"],
        "B_w_up": _B_in["w_up"],
        "B_w_down": _B_in["w_down"],
    }

def reference(A_x, A_wqkv, A_w_phi, A_wo, B_x, B_w_gate, B_w_up, B_w_down):
    def _A_ref(x, wqkv, w_phi, wo):
        B, S, D = x.shape
        H = 16; Dh = D // H
        qkv = (lambda x, *d: x.permute(*d))((x @ wqkv).reshape(B, S, 3, H, Dh), 2, 0, 3, 1, 4)
        q, k, v = qkv[0], qkv[1], qkv[2]
        pq = torch.einsum("bhsd,hdf->bhsf", q, w_phi)
        pk = torch.einsum("bhsd,hdf->bhsf", k, w_phi)
        phi_q = torch.concatenate([_softmax(pq, axis=-1), _softmax(-pq, axis=-1)], axis=-1)
        phi_k = torch.concatenate([_softmax(pk, axis=-1), _softmax(-pk, axis=-1)], axis=-1)
        kv = torch.einsum("bhsf,bhsd->bhfd", phi_k, v)
        z  = torch.einsum("bhsf->bhf", phi_k)
        num = torch.einsum("bhqf,bhfd->bhqd", phi_q, kv)
        den = torch.einsum("bhqf,bhf->bhq", phi_q, z)[..., None] + 1e-6
        o = num / den
        return (lambda x, *d: x.permute(*d))(o, 0, 2, 1, 3).reshape(B, S, D) @ wo

    def _B_ref(x, w_gate, w_up, w_down):
        g = torch.einsum("bsd,df->bsf", x, w_gate)
        u = torch.einsum("bsd,df->bsf", x, w_up)
        h = _sigmoid(g) * u
        return torch.einsum("bsf,fd->bsd", h, w_down)

    x = A_x
    x = x + _A_ref(_layernorm(x, axis=-1), A_wqkv, A_w_phi, A_wo)
    x = x + _B_ref(_layernorm(x, axis=-1), B_w_gate, B_w_up, B_w_down)
    x = x + _A_ref(_layernorm(x, axis=-1), A_wqkv, A_w_phi, A_wo)
    x = x + _B_ref(_layernorm(x, axis=-1), B_w_gate, B_w_up, B_w_down)
    return x
```

```python
import re

_REG = re.compile(r"^(-?)(abs\()?([vas])(?:(\d+)|\[(\d+):(\d+)\])\)?$")


def parse_reg(tok):
    tok = tok.strip()
    if tok in ("vcc",):
        return [("s", 106), ("s", 107)]
    if tok == "vcc_lo":
        return [("s", 106)]
    if tok == "vcc_hi":
        return [("s", 107)]
    if tok == "exec":
        return [("s", 126), ("s", 127)]
    if tok == "m0":
        return [("s", 124)]
    m = _REG.match(tok)
    if not m:
        return []
    kind = m.group(3)
    if m.group(4) is not None:
        lo = hi = int(m.group(4))
    else:
        lo, hi = int(m.group(5)), int(m.group(6))
    return [(kind, i) for i in range(lo, hi + 1)]


TRANS = ("v_exp_f32", "v_rcp_f32", "v_rsq_f32", "v_sqrt_f32", "v_log_f32", "v_sin_f32", "v_cos_f32")


class Ins:
    __slots__ = ("text", "op", "cls", "wr", "rd", "srcc", "ab", "slots", "data")

    def __init__(self, text):
        self.text = text
        body = text.split(";")[0].strip()
        parts = body.split(None, 1)
        self.op = parts[0]
        ops = []
        if len(parts) > 1:
            cur = ""
            depth = 0
            for ch in parts[1]:
                if ch == "[":
                    depth += 1
                if ch == "]":
                    depth -= 1
                if ch == "," and depth == 0:
                    ops.append(cur.strip())
                    cur = ""
                else:
                    cur += ch
            ops.append(cur.strip())
        ops2 = []
        for o in ops:
            ops2.append(o.split()[0] if o else o)
        op = self.op
        self.wr = []
        self.rd = []
        self.srcc = []
        self.ab = []
        self.data = []
        self.slots = 1
        R = [parse_reg(o) for o in ops2]
        if op == "s_nop":
            self.cls = "nop"
            self.slots = int(ops2[0], 0) + 1
        elif op.startswith("v_mfma"):
            self.cls = "mfma"
            self.wr = R[0]
            self.ab = R[1] + R[2]
            self.srcc = R[3]
            self.rd = R[1] + R[2] + R[3]
        elif op.startswith("v_permlane"):
            self.cls = "perm"
            self.wr = R[0] + R[1]
            self.rd = R[0] + R[1]
        elif op.startswith("v_readfirstlane") or op.startswith("v_readlane"):
            self.cls = "rfl"
            self.wr = R[0]
            self.rd = sum(R[1:], [])
        elif op.startswith("v_dot2c"):
            self.cls = "dot"
            self.wr = R[0]
            self.rd = R[0] + R[1] + R[2]
            self.srcc = R[0]
            self.ab = R[1] + R[2]
        elif op.startswith("v_dot"):
            self.cls = "dot"
            self.wr = R[0]
            self.rd = R[1] + R[2] + R[3]
            self.srcc = R[3]
            self.ab = R[1] + R[2]
        elif op.startswith("v_"):
            self.cls = "trans" if op.split("_e")[0] in TRANS or op in TRANS else "valu"
            self.wr = R[0]
            self.rd = sum(R[1:], [])
            if op.startswith("v_fmac") or op.startswith("v_pk_fmac"):
                self.rd += R[0]
            if op.startswith("v_add_co") or op.startswith("v_addc_co") or op.startswith("v_sub_co"):
                self.wr = R[0] + R[1]
                self.rd = sum(R[2:], [])
            if op.startswith("v_cndmask") and len(ops2) == 3:
                self.rd += parse_reg("vcc")
        elif op.startswith("buffer_") or op.startswith("global_"):
            self.cls = "vmem"
            lds = " lds" in (" " + body + " ").replace(" lds ", " lds ")
            is_lds = body.split()[-1] == "lds"
            if "store" in op or "atomic" in op:
                self.data = R[0]
                self.rd = sum(R, [])
            elif is_lds:
                self.rd = sum(R, []) + parse_reg("m0")
                self.cls = "dma"
            else:
                self.wr = R[0]
                self.rd = sum(R[1:], [])
        elif op.startswith("ds_"):
            self.cls = "ds"
            if "write" in op:
                self.rd = sum(R, [])
            else:
                self.wr = R[0]
                self.rd = sum(R[1:], [])
        elif op.startswith("s_"):
            self.cls = "salu"
            if op.startswith("s_cmp") or op.startswith("s_cbranch") or op.startswith("s_branch") or op in (
                "s_barrier", "s_endpgm", "s_waitcnt", "s_setprio", "s_sleep"):
                self.rd = sum(R, [])
            else:
                self.wr = R[0] if R else []
                self.rd = sum(R[1:], [])
                if "saveexec" in op:
                    self.wr += parse_reg("exec")
        else:
            raise ValueError("unknown op " + text)


def _ov(a, b):
    return bool(set(a) & set(b))


VALUISH = ("valu", "trans", "dot", "perm", "rfl")


def need(p, c):
    n = 0
    if p.cls in ("valu", "trans", "perm") and c.cls == "mfma" and _ov(p.wr, c.rd):
        n = max(n, 2)
    if p.cls == "mfma":
        if c.cls == "mfma":
            if _ov(p.wr, c.ab):
                n = max(n, 8)
            if _ov(p.wr, c.srcc) and p.wr != c.srcc:
                n = max(n, 6)
            if _ov(p.wr, c.wr) and p.wr != c.srcc:
                n = max(n, 8)
        elif c.cls in VALUISH:
            if _ov(p.wr, c.rd) or _ov(p.wr, c.wr):
                n = max(n, 8)
            if _ov(p.srcc, c.wr):
                n = max(n, 3)
        elif c.cls in ("vmem", "ds", "dma"):
            if _ov(p.wr, c.rd) or _ov(p.wr, c.wr):
                n = max(n, 8)
    if p.cls == "trans" and c.cls in ("valu", "dot", "perm", "rfl") and _ov(p.wr, c.rd):
        n = max(n, 1)
    if p.cls in VALUISH and c.cls == "perm" and _ov(p.wr, c.rd):
        n = max(n, 2)
    if p.cls in VALUISH:
        sw = [r for r in p.wr if r[0] == "s"]
        if sw:
            if c.cls in VALUISH and _ov(sw, c.rd):
                n = max(n, 4 if c.cls == "rfl" else 2)
            if c.cls in ("vmem", "dma") and _ov(sw, c.rd):
                n = max(n, 5)
            if c.cls == "salu" and _ov(sw, c.rd):
                n = max(n, 1)
        if c.cls == "rfl" and _ov([r for r in p.wr if r[0] != "s"], c.rd):
            n = max(n, 1)
    if p.cls == "salu" and ("s", 124) in p.wr and c.cls == "dma":
        n = max(n, 1)
    if p.cls == "vmem" and len(p.data) >= 3 and _ov(p.data, c.wr):
        n = max(n, 2)
    if p.cls == "dot":
        if c.cls == "dot" and c.op == p.op:
            if _ov(p.wr, c.ab):
                n = max(n, 3)
        elif c.cls != "nop" and (_ov(p.wr, c.rd) or _ov(p.wr, c.wr)):
            n = max(n, 3)
    return n


class Asm:
    def __init__(self):
        self.out = []
        self.hist = []

    def raw(self, s):
        self.out.append(s)

    def label(self, name):
        self.out.append(name + ":")
        self.out.append("    s_nop 7")
        self.out.append("    s_nop 7")
        self.hist = []

    def c(self, s):
        self.out.append("    ; " + s)

    def __call__(self, text):
        ins = Ins(text)
        if ins.cls != "nop":
            req = 0
            dist = 0
            for p in reversed(self.hist):
                nd = need(p, ins)
                if nd > dist:
                    req = max(req, nd - dist)
                dist += p.slots
                if dist > 24:
                    break
            while req > 0:
                k = min(req, 16)
                nop = Ins("s_nop %d" % (k - 1))
                self.out.append("    " + nop.text)
                self.hist.append(nop)
                req -= k
        self.out.append("    " + text)
        self.hist.append(ins)
        if len(self.hist) > 40:
            self.hist = self.hist[-40:]

    def text(self):
        return "\n".join(self.out) + "\n"


def vr(base, n=1):
    return "v%d" % base if n == 1 else "v[%d:%d]" % (base, base + n - 1)


def sr(base, n=1):
    return "s%d" % base if n == 1 else "s[%d:%d]" % (base, base + n - 1)
```

```python
import sys
from asmlib import Asm, vr, sr

OFF_WQKV = 0
SZ_WQKV = 16 * 84 * 1024
OFF_CQKV = OFF_WQKV + SZ_WQKV
SZ_CQKV = 16 * 6 * 1024
OFF_WPHI = OFF_CQKV + SZ_CQKV
SZ_WPHI = 16 * 2 * 1024
OFF_WO = OFF_WPHI + SZ_WPHI
SZ_WO = 16 * 28 * 1024
OFF_WGU = OFF_WO + SZ_WO
SZ_WGU = 112 * 14 * 2 * 1024
OFF_CGU = OFF_WGU + SZ_WGU
SZ_CGU = 112 * 2 * 1024
OFF_WD = OFF_CGU + SZ_CGU
SZ_WD = 28 * 56 * 1024
OFF_KV = OFF_WD + SZ_WD
SZ_KV = 2 * 16 * 8192
OFF_PHIQ = OFF_KV + SZ_KV
SZ_PHIQ = 128 * 16 * 2 * 1024
OFF_X1 = OFF_PHIQ + SZ_PHIQ
SZ_X = 2048 * 448 * 2
OFF_X2 = OFF_X1 + SZ_X
OFF_H = OFF_X2 + SZ_X
SZ_H = 128 * 56 * 1024
WS_TOTAL = OFF_H + SZ_H

OOB = 0x40000000
LOG2E = 0x3FB8AA3B
ONES_BF = 0x3F803F80

kernels = []


def kbegin(a, name):
    a.raw(".globl %s" % name)
    a.raw(".p2align 8")
    a.raw(".type %s,@function" % name)
    a.raw(name + ":")
    a.hist = []


def srd(a, d, p, off, size):
    if off:
        a("s_add_u32 s%d, s%d, 0x%x" % (d, p, off))
        a("s_addc_u32 s%d, s%d, 0" % (d + 1, p + 1))
        a("s_and_b32 s%d, s%d, 0xffff" % (d + 1, d + 1))
    else:
        a("s_mov_b32 s%d, s%d" % (d, p))
        a("s_and_b32 s%d, s%d, 0xffff" % (d + 1, p + 1))
    a("s_mov_b32 s%d, 0x%x" % (d + 2, size))
    a("s_mov_b32 s%d, 0x20000" % (d + 3))


def kmapD_slot(j):
    return j if j < 4 else 12 + j


def gen_prep(a):
    name = "prep_kernel"
    kbegin(a, name)
    a("s_cmp_ge_u32 s2, 120")
    a("s_cbranch_scc1 prep_done")
    a("s_load_dwordx16 s[4:19], s[0:1], 0")
    a("s_load_dwordx2 s[20:21], s[0:1], 80")
    a("v_and_b32 v1, 63, v0")
    a("v_lshrrev_b32 v2, 6, v0")
    a("v_readfirstlane_b32 s3, v2")
    a("v_and_b32 v3, 15, v1")
    a("v_lshrrev_b32 v4, 4, v1")
    a("v_lshlrev_b32 v5, 4, v1")
    a("v_mov_b32 v6, 0x%x" % OOB)
    a("v_mov_b32 v8, 0x%x" % ONES_BF)
    a("v_mov_b32 v9, 0x%x" % ONES_BF)
    a("v_mov_b32 v10, 0x%x" % ONES_BF)
    a("v_mov_b32 v11, 0x%x" % ONES_BF)
    a("v_cmp_eq_u32 s[40:41], 3, v4")
    a("s_waitcnt lgkmcnt(0)")
    srd(a, 24, 20, 0, WS_TOTAL)
    a("s_cmp_lt_u32 s2, 24")
    a("s_cbranch_scc1 prep_wqkv")
    a("s_cmp_lt_u32 s2, 80")
    a("s_cbranch_scc1 prep_wgu")
    a("s_cmp_lt_u32 s2, 108")
    a("s_cbranch_scc1 prep_wd")
    a("s_cmp_lt_u32 s2, 115")
    a("s_cbranch_scc1 prep_wo")
    a("s_cmp_lt_u32 s2, 116")
    a("s_cbranch_scc1 prep_wphi")
    a("s_branch prep_zero")

    FR = 32

    RAW = 100
    pend = []

    def gather(frag_idx, voffs, soffs):
        for j in range(8):
            a("s_mov_b32 s36, 0x%x" % soffs[j])
            a("buffer_load_ushort v%d, v%d, s[28:31], s36 offen" % (RAW + frag_idx * 8 + j, voffs[j]))
        pend.append(frag_idx)

    def pack():
        a("s_waitcnt vmcnt(0)")
        for f in pend:
            for i in range(4):
                a("v_lshl_or_b32 v%d, v%d, 16, v%d" % (FR + f * 4 + i, RAW + f * 8 + 2 * i + 1, RAW + f * 8 + 2 * i))
        del pend[:]

    def colsum_and_store(nfr, s_dst, dst_stride, s_cdst):
        pack()
        for i in range(nfr):
            a("v_mfma_f32_16x16x32_bf16 v[12:15], %s, v[8:11], %s" % (vr(FR + 4 * i, 4), "0" if i == 0 else "v[12:15]"))
        for i in range(nfr):
            a("s_add_u32 s37, s%d, 0x%x" % (s_dst, i * dst_stride))
            a("buffer_store_dwordx4 %s, v5, s[24:27], s37 offen" % vr(FR + 4 * i, 4))
        a("buffer_store_dwordx4 v[12:15], v5, s[24:27], s%d offen" % s_cdst)
        a("s_branch prep_done")

    a.label("prep_wqkv")
    srd(a, 28, 6, 0, 448 * 1344 * 2)
    a("s_lshl_b32 s32, s2, 2")
    a("s_add_u32 s32, s32, s3")
    a("s_lshr_b32 s33, s32, 4")
    a("s_and_b32 s34, s32, 15")
    a("s_lshr_b32 s35, s33, 1")
    a("s_mul_i32 s35, s35, 448")
    a("s_mul_i32 s38, s34, 28")
    a("s_add_u32 s35, s35, s38")
    a("s_and_b32 s38, s33, 1")
    a("s_lshl_b32 s38, s38, 4")
    a("s_add_u32 s35, s35, s38")
    a("s_sub_u32 s38, 28, s38")
    a("v_add_u32 v16, s35, v3")
    a("v_lshlrev_b32 v16, 1, v16")
    a("v_mul_u32_u24 v17, %d, v4" % (8 * 2688))
    a("v_add_u32 v16, v16, v17")
    a("v_cmp_gt_u32 vcc, s38, v3")
    a("v_cndmask_b32 v16, v6, v16, vcc")
    for ks in range(14):
        gather(ks, [16] * 8, [(32 * ks + j) * 2688 for j in range(8)])
    a("s_mul_i32 s39, s34, 84")
    a("s_mul_i32 s42, s33, 14")
    a("s_add_u32 s39, s39, s42")
    a("s_lshl_b32 s39, s39, 10")
    a("s_add_u32 s39, s39, 0x%x" % OFF_WQKV)
    a("s_mul_i32 s42, s34, 6")
    a("s_add_u32 s42, s42, s33")
    a("s_lshl_b32 s42, s42, 10")
    a("s_add_u32 s42, s42, 0x%x" % OFF_CQKV)
    colsum_and_store(14, 39, 1024, 42)

    a.label("prep_wgu")
    a("s_sub_u32 s32, s2, 24")
    a("s_lshl_b32 s32, s32, 2")
    a("s_add_u32 s32, s32, s3")
    a("s_lshr_b32 s33, s32, 1")
    a("s_and_b32 s34, s32, 1")
    a("s_cmp_eq_u32 s34, 0")
    a("s_cselect_b32 s44, s14, s16")
    a("s_cselect_b32 s45, s15, s17")
    srd(a, 28, 44, 0, 448 * 1792 * 2)
    a("s_lshl_b32 s35, s33, 4")
    a("v_add_u32 v16, s35, v3")
    a("v_lshlrev_b32 v16, 1, v16")
    a("v_mul_u32_u24 v17, %d, v4" % (8 * 3584))
    a("v_add_u32 v16, v16, v17")
    for ks in range(14):
        gather(ks, [16] * 8, [(32 * ks + j) * 3584 for j in range(8)])
    a("s_mul_i32 s39, s33, 28")
    a("s_add_u32 s39, s39, s34")
    a("s_lshl_b32 s39, s39, 10")
    a("s_add_u32 s39, s39, 0x%x" % OFF_WGU)
    a("s_lshl_b32 s42, s32, 10")
    a("s_add_u32 s42, s42, 0x%x" % OFF_CGU)
    colsum_and_store(14, 39, 2048, 42)

    a.label("prep_wd")
    srd(a, 28, 18, 0, 1792 * 448 * 2)
    a("s_sub_u32 s32, s2, 80")
    a("s_lshl_b32 s32, s32, 2")
    a("s_add_u32 s32, s32, s3")
    a("s_lshr_b32 s33, s32, 2")
    a("s_and_b32 s34, s32, 3")
    a("s_lshl_b32 s35, s33, 4")
    a("v_add_u32 v16, s35, v3")
    a("v_lshlrev_b32 v16, 1, v16")
    a("v_mul_u32_u24 v17, %d, v4" % (4 * 896))
    a("v_add_u32 v16, v16, v17")
    a("s_mul_i32 s35, s34, %d" % (14 * 32 * 896))
    a("v_add_u32 v16, s35, v16")
    for i in range(14):
        gather(i, [16] * 8, [(32 * i + kmapD_slot(j)) * 896 for j in range(8)])
    a("s_mul_i32 s39, s33, 56")
    a("s_mul_i32 s42, s34, 14")
    a("s_add_u32 s39, s39, s42")
    a("s_lshl_b32 s39, s39, 10")
    a("s_add_u32 s39, s39, 0x%x" % OFF_WD)
    pack()
    for i in range(14):
        a("s_add_u32 s37, s39, 0x%x" % (i * 1024))
        a("buffer_store_dwordx4 %s, v5, s[24:27], s37 offen" % vr(FR + 4 * i, 4))
    a("s_branch prep_done")

    a.label("prep_wo")
    srd(a, 28, 10, 0, 448 * 448 * 2)
    a("s_sub_u32 s32, s2, 108")
    a("s_lshl_b32 s32, s32, 2")
    a("s_add_u32 s32, s32, s3")
    a("s_lshl_b32 s35, s32, 4")
    a("v_add_u32 v16, s35, v3")
    a("v_lshlrev_b32 v16, 1, v16")
    a("v_mul_u32_u24 v17, %d, v4" % (4 * 896))
    a("v_add_u32 v16, v16, v17")
    a("v_cndmask_b32 v18, v16, v6, s[40:41]")
    for h in range(16):
        gather(h, [16] * 4 + [18] * 4, [(h * 28 + kmapD_slot(j)) * 896 for j in range(8)])
    a("s_lshl_b32 s39, s32, 10")
    a("s_add_u32 s39, s39, 0x%x" % OFF_WO)
    pack()
    for h in range(16):
        a("s_add_u32 s37, s39, 0x%x" % (h * 28 * 1024))
        a("buffer_store_dwordx4 %s, v5, s[24:27], s37 offen" % vr(FR + 4 * h, 4))
    a("s_branch prep_done")

    a.label("prep_wphi")
    srd(a, 28, 8, 0, 16 * 28 * 28 * 2)
    a("s_mul_i32 s35, s3, %d" % (4 * 1568))
    a("v_lshlrev_b32 v16, 1, v3")
    a("v_mul_u32_u24 v17, %d, v4" % (4 * 56))
    a("v_add_u32 v16, v16, v17")
    a("v_add_u32 v16, s35, v16")
    a("v_cndmask_b32 v18, v16, v6, s[40:41]")
    a("v_add_u32 v19, 32, v16")
    a("v_cmp_gt_u32 vcc, 12, v3")
    a("v_cndmask_b32 v19, v6, v19, vcc")
    a("v_cndmask_b32 v20, v19, v6, s[40:41]")
    for hh in range(4):
        for ft in range(2):
            vo = [16] * 4 + [18] * 4 if ft == 0 else [19] * 4 + [20] * 4
            gather(hh * 2 + ft, vo, [hh * 1568 + kmapD_slot(j) * 56 for j in range(8)])
    a("s_lshl_b32 s39, s3, 13")
    a("s_add_u32 s39, s39, 0x%x" % OFF_WPHI)
    pack()
    for i in range(8):
        a("s_add_u32 s37, s39, 0x%x" % (i * 1024))
        a("buffer_store_dwordx4 %s, v5, s[24:27], s37 offen" % vr(FR + 4 * i, 4))
    a("s_branch prep_done")

    a.label("prep_zero")
    a("s_sub_u32 s32, s2, 116")
    a("s_lshl_b32 s39, s32, 16")
    a("s_add_u32 s39, s39, 0x%x" % OFF_KV)
    a("v_lshlrev_b32 v16, 4, v0")
    for i in range(4):
        a("v_mov_b32 v%d, 0" % (12 + i))
    for i in range(16):
        a("s_add_u32 s37, s39, 0x%x" % (i * 4096))
        a("buffer_store_dwordx4 v[12:15], v16, s[24:27], s37 offen")
    a.label("prep_done")
    a("s_endpgm")
    kernels.append((name, 120, 256, 0, 232, 48))


def butterfly(a, regs, tmp, op):
    for swap in ("v_permlane16_swap_b32", "v_permlane32_swap_b32"):
        for r, t in zip(regs, tmp):
            a("v_mov_b32 v%d, v%d" % (t, r))
        for r, t in zip(regs, tmp):
            a("%s v%d, v%d" % (swap, r, t))
        for r, t in zip(regs, tmp):
            a("%s v%d, v%d, v%d" % (op, r, r, t))


def ln_finish(a, vsum, vsq, vmb, vrinv, t0, t1):
    a("v_mul_f32 v%d, 0x3b124925, v%d" % (vsum, vsum))
    a("v_mul_f32 v%d, 0x3b124925, v%d" % (vsq, vsq))
    a("v_fma_f32 v%d, -v%d, v%d, v%d" % (vsq, vsum, vsum, vsq))
    a("v_max_f32 v%d, 0, v%d" % (vsq, vsq))
    a("v_cvt_pk_bf16_f32 v%d, v%d, v%d" % (t0, vsum, vsq))
    a("v_lshlrev_b32 v%d, 16, v%d" % (vmb, t0))
    a("v_and_b32 v%d, 0xffff0000, v%d" % (t1, t0))
    a("v_add_f32 v%d, 0x3727c5ac, v%d" % (t1, t1))
    a("v_cvt_pk_bf16_f32 v%d, v%d, v%d" % (t0, t1, t1))
    a("v_lshlrev_b32 v%d, 16, v%d" % (t1, t0))
    a("v_sqrt_f32 v%d, v%d" % (t1, t1))
    a("v_cvt_pk_bf16_f32 v%d, v%d, v%d" % (t0, t1, t1))
    a("v_lshlrev_b32 v%d, 16, v%d" % (t1, t0))
    a("v_rcp_f32 v%d, v%d" % (vrinv, t1))


def softmax_pair(a, P, T, outp, outm, sg3, vL):
    E = T[0:8]
    G = T[8:16]
    mx, mn, t0, t1 = T[16], T[17], T[18], T[19]
    for i in range(4):
        a("v_cvt_pk_bf16_f32 v%d, v%d, v%d" % (E[i], P[2 * i], P[2 * i + 1]))
    for i in range(4):
        a("v_lshlrev_b32 v%d, 16, v%d" % (P[2 * i], E[i]))
        a("v_and_b32 v%d, 0xffff0000, v%d" % (P[2 * i + 1], E[i]))
    a("v_max3_f32 v%d, v%d, v%d, v%d" % (t0, P[4], P[5], P[6]))
    a("v_min3_f32 v%d, v%d, v%d, v%d" % (t1, P[4], P[5], P[6]))
    a("v_max_f32 v%d, v%d, v%d" % (t0, t0, P[7]))
    a("v_min_f32 v%d, v%d, v%d" % (t1, t1, P[7]))
    a("v_cndmask_b32 v%d, v%d, v%d, %s" % (t0, t0, P[0], sg3))
    a("v_cndmask_b32 v%d, v%d, v%d, %s" % (t1, t1, P[0], sg3))
    a("v_max3_f32 v%d, v%d, v%d, v%d" % (mx, P[0], P[1], P[2]))
    a("v_min3_f32 v%d, v%d, v%d, v%d" % (mn, P[0], P[1], P[2]))
    a("v_max3_f32 v%d, v%d, v%d, v%d" % (mx, mx, P[3], t0))
    a("v_min3_f32 v%d, v%d, v%d, v%d" % (mn, mn, P[3], t1))
    butterfly(a, [mx], [t0], "v_max_f32")
    butterfly(a, [mn], [t1], "v_min_f32")
    a("v_mul_f32 v%d, v%d, v%d" % (mx, mx, vL))
    a("v_mul_f32 v%d, v%d, v%d" % (mn, mn, vL))
    for i in range(8):
        a("v_fma_f32 v%d, v%d, v%d, -v%d" % (E[i], P[i], vL, mx))
        a("v_fma_f32 v%d, -v%d, v%d, v%d" % (G[i], P[i], vL, mn))
    for i in range(8):
        a("v_exp_f32 v%d, v%d" % (E[i], E[i]))
        a("v_exp_f32 v%d, v%d" % (G[i], G[i]))
    for i in range(4, 8):
        a("v_cndmask_b32 v%d, v%d, 0, %s" % (E[i], E[i], sg3))
        a("v_cndmask_b32 v%d, v%d, 0, %s" % (G[i], G[i], sg3))
    sp, sm = mx, mn
    a("v_add_f32 v%d, v%d, v%d" % (sp, E[0], E[1]))
    a("v_add_f32 v%d, v%d, v%d" % (sm, G[0], G[1]))
    for i in range(2, 8):
        a("v_add_f32 v%d, v%d, v%d" % (sp, sp, E[i]))
        a("v_add_f32 v%d, v%d, v%d" % (sm, sm, G[i]))
    butterfly(a, [sp, sm], [t0, t1], "v_add_f32")
    a("v_rcp_f32 v%d, v%d" % (sp, sp))
    a("v_rcp_f32 v%d, v%d" % (sm, sm))
    for i in range(8):
        a("v_mul_f32 v%d, v%d, v%d" % (E[i], E[i], sp))
        a("v_mul_f32 v%d, v%d, v%d" % (G[i], G[i], sm))
    for i in range(4):
        a("v_cvt_pk_bf16_f32 v%d, v%d, v%d" % (outp + i, E[2 * i], E[2 * i + 1]))
        a("v_cvt_pk_bf16_f32 v%d, v%d, v%d" % (outm + i, G[2 * i], G[2 * i + 1]))


MF = "v_mfma_f32_16x16x32_bf16"


def gen_k1(a, layer):
    name = "k1l%d_kernel" % layer
    kbegin(a, name)
    LDS_RED = 86016
    a("s_cmp_ge_u32 s2, 256")
    a("s_cbranch_scc1 %s_done" % name)
    a("s_load_dwordx2 s[4:5], s[0:1], 0")
    a("s_load_dwordx2 s[6:7], s[0:1], 80")
    a("v_and_b32 v1, 63, v0")
    a("v_lshrrev_b32 v2, 6, v0")
    a("v_readfirstlane_b32 s3, v2")
    a("v_and_b32 v3, 15, v1")
    a("v_lshrrev_b32 v4, 4, v1")
    a("v_lshlrev_b32 v5, 4, v1")
    a("v_cmp_eq_u32 s[40:41], 3, v4")
    a("s_and_b32 s20, s2, 7")
    a("s_lshr_b32 s21, s2, 3")
    a("s_and_b32 s22, s20, 3")
    a("s_lshl_b32 s22, s22, 2")
    a("s_and_b32 s23, s21, 3")
    a("s_add_u32 s22, s22, s23")
    a("s_lshr_b32 s23, s20, 2")
    a("s_lshl_b32 s23, s23, 3")
    a("s_lshr_b32 s24, s21, 2")
    a("s_add_u32 s23, s23, s24")
    a("s_lshl_b32 s24, s22, 7")
    a("s_lshl_b32 s25, s3, 5")
    a("s_add_u32 s24, s24, s25")
    a("v_add_u32 v6, s24, v3")
    a("v_mul_u32_u24 v6, 896, v6")
    a("v_lshlrev_b32 v7, 4, v4")
    a("v_add_u32 v6, v6, v7")
    a("v_add_u32 v7, %d, v6" % (16 * 896))
    a("s_waitcnt lgkmcnt(0)")
    srd(a, 8, 6, 0, WS_TOTAL)
    if layer == 0:
        srd(a, 12, 4, 0, SZ_X)
    else:
        srd(a, 12, 6, OFF_X2, SZ_X)
    a("s_mul_i32 s26, s23, 86016")
    a("s_add_u32 s26, s26, 0x%x" % OFF_WQKV)
    a("s_mul_i32 s27, s3, %d" % (21 * 1024))
    a("s_add_u32 s26, s26, s27")
    for c in range(6):
        n = min(4, 21 - 4 * c)
        a("s_add_u32 s28, s27, %d" % (c * 4096))
        a("s_mov_b32 m0, s28")
        a("s_add_u32 s29, s26, %d" % (c * 4096))
        for i in range(n):
            a("buffer_load_dwordx4 v5, s[8:11], s29 offen offset:%d lds" % (i * 1024))
    X = 16
    for rt in range(2):
        for ks in range(14):
            a("buffer_load_dwordx4 %s, v%d, s[12:15], 0 offen offset:%d" % (vr(X + (rt * 14 + ks) * 4, 4), 6 + rt, ks * 64))
    CS = 192
    a("s_mul_i32 s30, s23, 6144")
    a("s_add_u32 s30, s30, 0x%x" % OFF_CQKV)
    a("s_add_u32 s31, s30, 4096")
    for ct in range(6):
        a("buffer_load_dwordx4 %s, v5, s[8:11], s%d offen offset:%d" % (vr(CS + 4 * ct, 4), 30 if ct < 4 else 31, (ct % 4) * 1024))
    WP = 216
    a("s_lshl_b32 s32, s23, 11")
    a("s_add_u32 s32, s32, 0x%x" % OFF_WPHI)
    for ft in range(2):
        a("buffer_load_dwordx4 %s, v5, s[8:11], s32 offen offset:%d" % (vr(WP + 4 * ft, 4), ft * 1024))
    ID = 224
    VL = 230
    VONE = 231
    MB = 232
    RI = 234
    a("v_mov_b32 v%d, 0x%x" % (VL, LOG2E))
    a("v_mov_b32 v%d, 0x%x" % (VONE, ONES_BF))
    for i in (0, 1, 4, 5):
        a("v_mov_b32 v%d, 0" % (ID + i))
    a("v_lshrrev_b32 v8, 2, v3")
    a("v_cmp_eq_u32 vcc, v8, v4")
    a("v_and_b32 v9, 3, v3")
    a("v_and_b32 v10, 1, v9")
    a("v_lshlrev_b32 v10, 4, v10")
    a("v_mov_b32 v11, 0x3f80")
    a("v_lshlrev_b32 v11, v10, v11")
    a("v_cndmask_b32 v11, 0, v11, vcc")
    a("v_cmp_gt_u32 vcc, 2, v9")
    a("v_cndmask_b32 v%d, 0, v11, vcc" % (ID + 2))
    a("v_cndmask_b32 v%d, v11, 0, vcc" % (ID + 3))
    a("s_waitcnt vmcnt(8)")
    T = 236
    for i in range(8):
        a("v_mov_b32 v%d, 0" % (T + i))
    for ks in range(14):
        for r in range(4):
            for rt in range(2):
                x = X + (rt * 14 + ks) * 4 + r
                a("v_dot2c_f32_bf16 v%d, v%d, v%d" % (T + rt * 4 + (r & 1), x, VONE))
                a("v_dot2c_f32_bf16 v%d, v%d, v%d" % (T + rt * 4 + 2 + (r & 1), x, x))
    for rt in range(2):
        a("v_add_f32 v%d, v%d, v%d" % (T + rt * 4, T + rt * 4, T + rt * 4 + 1))
        a("v_add_f32 v%d, v%d, v%d" % (T + rt * 4 + 2, T + rt * 4 + 2, T + rt * 4 + 3))
    butterfly(a, [T, T + 2, T + 4, T + 6], [T + 8, T + 9, T + 10, T + 11], "v_add_f32")
    for rt in range(2):
        ln_finish(a, T + rt * 4, T + rt * 4 + 2, MB + rt, RI + rt, T + 8, T + 9)
    a("s_waitcnt vmcnt(0)")
    a("s_barrier")
    WB = 128
    ACC = 160
    a("v_add_u32 v8, 57344, v5")

    def lds_frag(dst, ct, ks):
        off = (ct * 14 + ks) * 1024
        if off < 57344:
            a("ds_read_b128 %s, v5 offset:%d" % (vr(dst, 4), off))
        else:
            a("ds_read_b128 %s, v8 offset:%d" % (vr(dst, 4), off - 57344))

    def gemm(cts):
        n = len(cts)
        for ci, ct in enumerate(cts):
            lds_frag(WB + ci * 4, ct, 0)
        for ks in range(14):
            cur = WB + (ks & 1) * 16
            nxt = WB + ((ks + 1) & 1) * 16
            if ks < 13:
                for ci, ct in enumerate(cts):
                    lds_frag(nxt + ci * 4, ct, ks + 1)
                a("s_waitcnt lgkmcnt(%d)" % n)
            else:
                a("s_waitcnt lgkmcnt(0)")
            for ci in range(n):
                for rt in range(2):
                    d = vr(ACC + (ci * 2 + rt) * 4, 4)
                    a("%s %s, %s, %s, %s" % (MF, d, vr(cur + ci * 4, 4), vr(X + (rt * 14 + ks) * 4, 4), "0" if ks == 0 else d))

    def ln_apply(ci, ct, rt, dst2):
        b = ACC + (ci * 2 + rt) * 4
        for r in range(4):
            a("v_fma_f32 v%d, -v%d, v%d, v%d" % (b + r, MB + rt, CS + ct * 4 + r, b + r))
        for r in range(4):
            a("v_mul_f32 v%d, v%d, v%d" % (b + r, b + r, RI + rt))
        a("v_cvt_pk_bf16_f32 v%d, v%d, v%d" % (dst2, b, b + 1))
        a("v_cvt_pk_bf16_f32 v%d, v%d, v%d" % (dst2 + 1, b + 2, b + 3))

    gemm([2, 3, 4, 5])
    KF, VF = 128, 136
    for rt in range(2):
        ln_apply(0, 2, rt, KF + 4 * rt)
        ln_apply(1, 3, rt, KF + 4 * rt + 2)
        ln_apply(2, 4, rt, VF + 4 * rt)
        ln_apply(3, 5, rt, VF + 4 * rt + 2)
        a("v_mov_b32 v9, 0x3f80")
        a("v_cndmask_b32 v%d, v%d, v9, s[40:41]" % (VF + 4 * rt + 2, VF + 4 * rt + 2))
    for rt in range(2):
        for ft in range(2):
            a("%s %s, %s, %s, 0" % (MF, vr(ACC + rt * 8 + ft * 4, 4), vr(WP + 4 * ft, 4), vr(KF + 4 * rt, 4)))
    PH = 144
    TT = list(range(236, 256))
    for rt in range(2):
        softmax_pair(a, [ACC + rt * 8 + i for i in range(8)], TT, PH + rt * 8, PH + rt * 8 + 4, "s[40:41]", VL)
    PKT = ACC + 16
    VT = 236
    srcs = []
    for rt in range(2):
        for b in range(2):
            for t in range(2):
                srcs.append((PH + rt * 8 + 4 * b, t, PKT + (2 * b + t) * 4 + 2 * rt))
        for t in range(2):
            srcs.append((VF + 4 * rt, t, VT + t * 4 + 2 * rt))
    for grp in range(0, 12, 4):
        for i, (src, t, dst) in enumerate(srcs[grp:grp + 4]):
            idr = vr(ID + 2, 4) if t == 0 else vr(ID, 4)
            a("%s %s, %s, %s, 0" % (MF, vr(ACC + 4 * i, 4), vr(src, 4), idr))
        for i, (src, t, dst) in enumerate(srcs[grp:grp + 4]):
            a("v_cvt_pk_bf16_f32 v%d, v%d, v%d" % (dst, ACC + 4 * i, ACC + 4 * i + 1))
            a("v_cvt_pk_bf16_f32 v%d, v%d, v%d" % (dst + 1, ACC + 4 * i + 2, ACC + 4 * i + 3))
    KVR = 128
    for ft in range(4):
        for dt in range(2):
            a("%s %s, %s, %s, 0" % (MF, vr(KVR + (ft * 2 + dt) * 4, 4), vr(PKT + 4 * ft, 4), vr(VT + 4 * dt, 4)))
    a("s_lshl_b32 s33, s3, 13")
    a("s_add_u32 s33, s33, %d" % LDS_RED)
    a("v_add_u32 v9, s33, v5")
    for t in range(8):
        a("ds_write_b128 v9, %s offset:%d" % (vr(KVR + 4 * t, 4), t * 1024))
    a("s_lshl_b32 s33, s3, 11")
    a("s_add_u32 s33, s33, %d" % LDS_RED)
    a("v_add_u32 v9, s33, v5")
    a("s_waitcnt lgkmcnt(0)")
    a("s_barrier")
    for w in range(4):
        for t in range(2):
            a("ds_read_b128 %s, v9 offset:%d" % (vr(KVR + (w * 2 + t) * 4, 4), w * 8192 + t * 1024))
    a("s_waitcnt lgkmcnt(0)")
    for t in range(2):
        for r in range(4):
            d = KVR + t * 4 + r
            a("v_add_f32 v%d, v%d, v%d" % (d, d, d + 8))
            a("v_add_f32 v%d, v%d, v%d" % (d + 16, d + 16, d + 24))
            a("v_add_f32 v%d, v%d, v%d" % (d, d, d + 16))
    a("s_lshl_b32 s33, s23, 13")
    a("s_add_u32 s33, s33, 0x%x" % (OFF_KV + layer * 131072))
    a("s_lshr_b32 s34, s3, 1")
    a("s_lshl_b32 s34, s34, 12")
    a("s_add_u32 s33, s33, s34")
    a("s_and_b32 s34, s3, 1")
    a("s_lshl_b32 s34, s34, 10")
    a("s_add_u32 s33, s33, s34")
    a("v_lshlrev_b32 v9, 2, v1")
    for t in range(2):
        for r in range(4):
            a("buffer_atomic_add_f32 v%d, v9, s[8:11], s33 offen offset:%d" % (KVR + t * 4 + r, t * 2048 + r * 256))
    a("s_waitcnt vmcnt(0)")
    gemm([0, 1])
    QF = 144
    for rt in range(2):
        ln_apply(0, 0, rt, QF + 4 * rt)
        ln_apply(1, 1, rt, QF + 4 * rt + 2)
    PQ = ACC + 16
    for rt in range(2):
        for ft in range(2):
            a("%s %s, %s, %s, 0" % (MF, vr(PQ + rt * 8 + ft * 4, 4), vr(WP + 4 * ft, 4), vr(QF + 4 * rt, 4)))
    PH = 128
    for rt in range(2):
        softmax_pair(a, [PQ + rt * 8 + i for i in range(8)], TT, PH + rt * 8, PH + rt * 8 + 4, "s[40:41]", VL)
    a("s_lshr_b32 s33, s24, 4")
    a("s_lshl_b32 s33, s33, 4")
    a("s_add_u32 s33, s33, s23")
    a("s_lshl_b32 s33, s33, 11")
    a("s_add_u32 s33, s33, 0x%x" % OFF_PHIQ)
    a("s_add_u32 s34, s33, 32768")
    for rt in range(2):
        for b in range(2):
            a("buffer_store_dwordx4 %s, v5, s[8:11], s%d offen offset:%d" % (vr(PH + rt * 8 + 4 * b, 4), 33 + rt, b * 1024))
    a.label("%s_done" % name)
    a("s_endpgm")
    kernels.append((name, 256, 256, LDS_RED + 32768, 256, 48))


def gen_k2(a, layer):
    name = "k2l%d_kernel" % layer
    kbegin(a, name)
    a("s_cmp_ge_u32 s2, 224")
    a("s_cbranch_scc1 %s_done" % name)
    a("s_load_dwordx2 s[4:5], s[0:1], 0")
    a("s_load_dwordx2 s[6:7], s[0:1], 80")
    a("v_and_b32 v1, 63, v0")
    a("v_lshrrev_b32 v2, 6, v0")
    a("v_readfirstlane_b32 s3, v2")
    a("v_and_b32 v3, 15, v1")
    a("v_lshrrev_b32 v4, 4, v1")
    a("v_lshlrev_b32 v5, 4, v1")
    a("v_lshlrev_b32 v6, 2, v1")
    a("v_lshlrev_b32 v7, 6, v4")
    a("v_add_u32 v7, 48, v7")
    a("s_and_b32 s20, s2, 7")
    a("s_lshr_b32 s21, s2, 3")
    a("s_lshl_b32 s22, s20, 2")
    a("s_and_b32 s23, s21, 3")
    a("s_add_u32 s22, s22, s23")
    a("s_lshr_b32 s23, s21, 2")
    a("s_waitcnt lgkmcnt(0)")
    srd(a, 8, 6, 0, WS_TOTAL)
    if layer == 0:
        srd(a, 12, 4, 0, SZ_X)
    else:
        srd(a, 12, 6, OFF_X2, SZ_X)
    srd(a, 16, 6, OFF_X1, SZ_X)
    a("s_lshr_b32 s24, s3, 1")
    a("s_lshl_b32 s25, s22, 2")
    a("s_add_u32 s24, s24, s25")
    a("s_lshl_b32 s24, s24, 4")
    a("v_add_u32 v8, s24, v3")
    a("v_mul_u32_u24 v8, 896, v8")
    a("s_and_b32 s25, s3, 1")
    a("s_lshl_b32 s25, s25, 5")
    a("s_lshl_b32 s26, s23, 6")
    a("s_add_u32 s25, s25, s26")
    a("s_lshl_b32 s25, s25, 1")
    a("v_lshlrev_b32 v9, 3, v4")
    a("v_add3_u32 v8, v8, v9, s25")
    RES = 12
    a("buffer_load_dwordx2 v[12:13], v8, s[12:15], 0 offen")
    a("buffer_load_dwordx2 v[14:15], v8, s[12:15], 0 offen offset:32")
    ACC = 16
    KVF = 80
    ZF = 112
    PQ = 128
    WO = 160
    KVB = 176
    ZB = 192
    NUM = 200
    OF = 212
    for hh in range(2):
        a("s_lshl_b32 s27, s3, 1")
        a("s_add_u32 s27, s27, %d" % hh)
        a("s_lshl_b32 s28, s27, 13")
        a("s_add_u32 s28, s28, 0x%x" % (OFF_KV + layer * 131072))
        a("s_add_u32 s29, s28, 4096")
        for b in range(2):
            for dt in range(2):
                for j in range(8):
                    a("buffer_load_dword v%d, v6, s[8:11], s%d offen offset:%d" % (KVF + (b * 2 + dt) * 8 + j, 28 + b, (dt * 8 + j) * 256))
        for b in range(2):
            for j in range(8):
                a("buffer_load_dword v%d, v7, s[8:11], s%d offen offset:%d" % (ZF + b * 8 + j, 28 + b, (8 + j) * 256))
        a("s_lshl_b32 s30, s22, 6")
        a("s_add_u32 s30, s30, s27")
        a("s_lshl_b32 s30, s30, 11")
        a("s_add_u32 s30, s30, 0x%x" % OFF_PHIQ)
        for rt in range(4):
            a("s_add_u32 s31, s30, %d" % (rt * 32768))
            for b in range(2):
                a("buffer_load_dwordx4 %s, v5, s[8:11], s31 offen offset:%d" % (vr(PQ + (rt * 2 + b) * 4, 4), b * 1024))
        a("s_mul_i32 s30, s27, 28")
        a("s_lshl_b32 s31, s23, 2")
        a("s_add_u32 s30, s30, s31")
        a("s_lshl_b32 s30, s30, 10")
        a("s_add_u32 s30, s30, 0x%x" % OFF_WO)
        for ct in range(4):
            a("buffer_load_dwordx4 %s, v5, s[8:11], s30 offen offset:%d" % (vr(WO + ct * 4, 4), ct * 1024))
        a("s_waitcnt vmcnt(12)")
        for i in range(16):
            a("v_cvt_pk_bf16_f32 v%d, v%d, v%d" % (KVB + i, KVF + 2 * i, KVF + 2 * i + 1))
        for i in range(8):
            a("v_cvt_pk_bf16_f32 v%d, v%d, v%d" % (ZB + i, ZF + 2 * i, ZF + 2 * i + 1))
        a("s_waitcnt vmcnt(0)")
        for rt in range(4):
            for dt in range(2):
                for b in range(2):
                    d = vr(NUM + dt * 4, 4)
                    a("%s %s, %s, %s, %s" % (MF, d, vr(KVB + (b * 2 + dt) * 4, 4), vr(PQ + (rt * 2 + b) * 4, 4), "0" if b == 0 else d))
            for b in range(2):
                d = vr(NUM + 8, 4)
                a("%s %s, %s, %s, %s" % (MF, d, vr(ZB + b * 4, 4), vr(PQ + (rt * 2 + b) * 4, 4), "0" if b == 0 else d))
            dn = NUM + 8
            a("v_cvt_pk_bf16_f32 v%d, v%d, v%d" % (dn + 1, dn, dn))
            a("v_lshlrev_b32 v%d, 16, v%d" % (dn, dn + 1))
            a("v_add_f32 v%d, 0x358637bd, v%d" % (dn, dn))
            a("v_cvt_pk_bf16_f32 v%d, v%d, v%d" % (dn + 1, dn, dn))
            a("v_lshlrev_b32 v%d, 16, v%d" % (dn, dn + 1))
            a("v_rcp_f32 v%d, v%d" % (dn, dn))
            for i in range(4):
                a("v_cvt_pk_bf16_f32 v%d, v%d, v%d" % (OF + i, NUM + 2 * i, NUM + 2 * i + 1))
            for i in range(4):
                a("v_lshlrev_b32 v%d, 16, v%d" % (NUM + 2 * i, OF + i))
                a("v_and_b32 v%d, 0xffff0000, v%d" % (NUM + 2 * i + 1, OF + i))
            for i in range(8):
                a("v_mul_f32 v%d, v%d, v%d" % (NUM + i, NUM + i, dn))
            for i in range(4):
                a("v_cvt_pk_bf16_f32 v%d, v%d, v%d" % (OF + i, NUM + 2 * i, NUM + 2 * i + 1))
            for ct in range(4):
                d = vr(ACC + (rt * 4 + ct) * 4, 4)
                a("%s %s, %s, %s, %s" % (MF, d, vr(WO + ct * 4, 4), vr(OF, 4), "0" if hh == 0 else d))
    reduce_store(a, ACC, RES, 16, name)
    kernels.append((name, 224, 512, 131072, 216, 48))


def reduce_store(a, ACC, RES, s_out, name):
    a("s_lshl_b32 s33, s3, 14")
    a("v_add_u32 v9, s33, v5")
    for t in range(16):
        a("ds_write_b128 v9, %s offset:%d" % (vr(ACC + 4 * t, 4), t * 1024))
    a("s_lshl_b32 s33, s3, 11")
    a("v_add_u32 v9, s33, v5")
    a("v_add_u32 v10, 0x10000, v9")
    a("s_waitcnt lgkmcnt(0)")
    a("s_barrier")
    for w in range(8):
        for t in range(2):
            base = 9 if w < 4 else 10
            a("ds_read_b128 %s, v%d offset:%d" % (vr(ACC + (w * 2 + t) * 4, 4), base, (w & 3) * 16384 + t * 1024))
    a("s_waitcnt lgkmcnt(0)")
    for step in (32, 16, 8):
        for base in range(0, step, 8):
            for i in range(8):
                d = ACC + base + i
                a("v_add_f32 v%d, v%d, v%d" % (d, d, d + step))
    a("s_waitcnt vmcnt(0)")
    for t in range(2):
        b = ACC + t * 4
        o = ACC + 8 + t * 2
        a("v_cvt_pk_bf16_f32 v%d, v%d, v%d" % (o, b, b + 1))
        a("v_cvt_pk_bf16_f32 v%d, v%d, v%d" % (o + 1, b + 2, b + 3))
        for i in range(2):
            a("v_lshlrev_b32 v%d, 16, v%d" % (b + 2 * i, o + i))
            a("v_and_b32 v%d, 0xffff0000, v%d" % (b + 2 * i + 1, o + i))
        e = ACC + 16 + t * 4
        for i in range(2):
            a("v_lshlrev_b32 v%d, 16, v%d" % (e + 2 * i, RES + 2 * t + i))
            a("v_and_b32 v%d, 0xffff0000, v%d" % (e + 2 * i + 1, RES + 2 * t + i))
        for i in range(4):
            a("v_add_f32 v%d, v%d, v%d" % (b + i, b + i, e + i))
        a("v_cvt_pk_bf16_f32 v%d, v%d, v%d" % (o, b, b + 1))
        a("v_cvt_pk_bf16_f32 v%d, v%d, v%d" % (o + 1, b + 2, b + 3))
        a("buffer_store_dwordx2 %s, v8, %s, 0 offen offset:%d" % (vr(o, 2), sr(s_out, 4), t * 32))
    a.label("%s_done" % name)
    a("s_endpgm")


def gen_k3(a, layer):
    name = "k3l%d_kernel" % layer
    kbegin(a, name)
    LDS_ST = 112 * 1024
    a("s_cmp_ge_u32 s2, 224")
    a("s_cbranch_scc1 %s_done" % name)
    a("s_load_dwordx2 s[6:7], s[0:1], 80")
    a("v_and_b32 v1, 63, v0")
    a("v_lshrrev_b32 v2, 6, v0")
    a("v_readfirstlane_b32 s3, v2")
    a("v_and_b32 v3, 15, v1")
    a("v_lshrrev_b32 v4, 4, v1")
    a("v_lshlrev_b32 v5, 4, v1")
    a("s_and_b32 s20, s2, 7")
    a("s_lshr_b32 s21, s2, 3")
    a("s_and_b32 s22, s20, 3")
    a("s_lshl_b32 s22, s22, 2")
    a("s_and_b32 s23, s21, 3")
    a("s_add_u32 s22, s22, s23")
    a("s_lshr_b32 s23, s20, 2")
    a("s_mul_i32 s23, s23, 7")
    a("s_lshr_b32 s24, s21, 2")
    a("s_add_u32 s23, s23, s24")
    a("s_lshl_b32 s23, s23, 3")
    a("s_add_u32 s23, s23, s3")
    a("s_lshl_b32 s24, s22, 7")
    a("s_lshl_b32 s25, s3, 4")
    a("s_add_u32 s24, s24, s25")
    a("v_add_u32 v6, s24, v3")
    a("v_mul_u32_u24 v6, 896, v6")
    a("v_lshlrev_b32 v7, 4, v4")
    a("v_add_u32 v6, v6, v7")
    a("s_waitcnt lgkmcnt(0)")
    srd(a, 8, 6, 0, WS_TOTAL)
    srd(a, 12, 6, OFF_X1, SZ_X)
    a("s_mul_i32 s26, s3, %d" % (14 * 1024))
    for ks in range(14):
        a("s_add_u32 s27, s26, %d" % (ks * 1024))
        a("s_mov_b32 m0, s27")
        a("s_mov_b32 s28, %d" % (ks * 64))
        a("buffer_load_dwordx4 v6, s[12:15], s28 offen lds")
    W = 136
    a("s_mul_i32 s29, s23, %d" % (28 * 1024))
    a("s_add_u32 s29, s29, 0x%x" % OFF_WGU)
    for ks in range(14):
        if ks % 2 == 0:
            a("s_add_u32 s30, s29, %d" % (ks * 2048))
        for mat in range(2):
            a("buffer_load_dwordx4 %s, v5, s[8:11], s30 offen offset:%d" % (vr(W + (ks * 2 + mat) * 4, 4), ((ks & 1) * 2 + mat) * 1024))
    CS = 248
    a("s_lshl_b32 s31, s23, 11")
    a("s_add_u32 s31, s31, 0x%x" % OFF_CGU)
    a("buffer_load_dwordx4 v[248:251], v5, s[8:11], s31 offen")
    a("buffer_load_dwordx4 v[252:255], v5, s[8:11], s31 offen offset:1024")
    ACC = 8
    XB = 72
    VONE = 7
    a("v_mov_b32 v7, 0x%x" % ONES_BF)
    a("v_add_u32 v6, 57344, v5")
    a("s_mul_i32 s32, s3, %d" % (14 * 1024))
    a("v_add_u32 v2, s32, v5")
    a("s_waitcnt vmcnt(30)")
    a("s_barrier")

    def xfrag(dst, rt, ks):
        off = (rt * 14 + ks) * 1024
        if off < 57344:
            a("ds_read_b128 %s, v5 offset:%d" % (vr(dst, 4), off))
        else:
            a("ds_read_b128 %s, v6 offset:%d" % (vr(dst, 4), off - 57344))

    for ks in range(14):
        a("ds_read_b128 %s, v2 offset:%d" % (vr(XB + ks * 4, 4), ks * 1024))
    S = ACC
    for i in range(4):
        a("v_mov_b32 v%d, 0" % (S + i))
    a("s_waitcnt lgkmcnt(0)")
    for ks in range(14):
        for r in range(4):
            x = XB + ks * 4 + r
            a("v_dot2c_f32_bf16 v%d, v%d, v%d" % (S + (r & 1), x, VONE))
            a("v_dot2c_f32_bf16 v%d, v%d, v%d" % (S + 2 + (r & 1), x, x))
    a("v_add_f32 v%d, v%d, v%d" % (S, S, S + 1))
    a("v_add_f32 v%d, v%d, v%d" % (S + 2, S + 2, S + 3))
    butterfly(a, [S, S + 2], [S + 4, S + 5], "v_add_f32")
    ln_finish(a, S, S + 2, S + 6, S + 7, S + 4, S + 5)
    a("s_lshl_b32 s33, s3, 7")
    a("s_add_u32 s33, s33, %d" % LDS_ST)
    a("v_lshlrev_b32 v2, 3, v3")
    a("v_add_u32 v2, s33, v2")
    a("ds_write_b64 v2, %s" % vr(S + 6, 2))
    for rt in range(8):
        xfrag(XB + rt * 4, rt, 0)
    for ks in range(14):
        cur = XB + (ks & 1) * 32
        nxt = XB + ((ks + 1) & 1) * 32
        if ks < 13:
            for rt in range(8):
                xfrag(nxt + rt * 4, rt, ks + 1)
            a("s_waitcnt vmcnt(%d) lgkmcnt(8)" % (2 + 2 * (13 - ks)))
        else:
            a("s_waitcnt vmcnt(2) lgkmcnt(0)")
        for rt in range(8):
            for mat in range(2):
                d = vr(ACC + (rt * 2 + mat) * 4, 4)
                a("%s %s, %s, %s, %s" % (MF, d, vr(W + (ks * 2 + mat) * 4, 4), vr(cur + rt * 4, 4), "0" if ks == 0 else d))
    a("s_barrier")
    a("v_lshlrev_b32 v2, 3, v3")
    a("v_add_u32 v2, %d, v2" % LDS_ST)
    for rt in range(8):
        a("ds_read_b64 %s, v2 offset:%d" % (vr(XB + 2 * rt, 2), rt * 128))
    a("s_mul_i32 s33, s22, %d" % (8 * 56))
    a("s_lshr_b32 s34, s23, 1")
    a("s_add_u32 s33, s33, s34")
    a("s_lshl_b32 s33, s33, 10")
    a("s_and_b32 s34, s23, 1")
    a("s_lshl_b32 s34, s34, 3")
    a("s_add_u32 s33, s33, s34")
    a("s_add_u32 s33, s33, 0x%x" % OFF_H)
    a("v_mov_b32 v7, 0xbfb8aa3b")
    a("s_waitcnt vmcnt(0) lgkmcnt(0)")
    T = XB + 16
    for rt in range(8):
        mb, ri = XB + 2 * rt, XB + 2 * rt + 1
        g = ACC + rt * 8
        u = g + 4
        t = T + (rt & 1) * 8
        for (b, c) in ((g, CS), (u, CS + 4)):
            for r in range(4):
                a("v_fma_f32 v%d, -v%d, v%d, v%d" % (b + r, mb, c + r, b + r))
            for r in range(4):
                a("v_mul_f32 v%d, v%d, v%d" % (b + r, b + r, ri))
        for i in range(4):
            a("v_cvt_pk_bf16_f32 v%d, v%d, v%d" % (t + i, g + 2 * i, g + 2 * i + 1))
        for i in range(4):
            a("v_lshlrev_b32 v%d, 16, v%d" % (g + 2 * i, t + i))
            a("v_and_b32 v%d, 0xffff0000, v%d" % (g + 2 * i + 1, t + i))
        for r in range(4):
            a("v_mul_f32 v%d, v%d, v7" % (g + r, g + r))
        for r in range(4):
            a("v_exp_f32 v%d, v%d" % (g + r, g + r))
        for r in range(4):
            a("v_add_f32 v%d, 1.0, v%d" % (g + r, g + r))
        for r in range(4):
            a("v_rcp_f32 v%d, v%d" % (g + r, g + r))
        for i in range(2):
            a("v_cvt_pk_bf16_f32 v%d, v%d, v%d" % (t + i, g + 2 * i, g + 2 * i + 1))
        for i in range(2):
            a("v_lshlrev_b32 v%d, 16, v%d" % (g + 2 * i, t + i))
            a("v_and_b32 v%d, 0xffff0000, v%d" % (g + 2 * i + 1, t + i))
        for r in range(4):
            a("v_mul_f32 v%d, v%d, v%d" % (g + r, g + r, u + r))
        a("v_cvt_pk_bf16_f32 v%d, v%d, v%d" % (t + 4, g, g + 1))
        a("v_cvt_pk_bf16_f32 v%d, v%d, v%d" % (t + 5, g + 2, g + 3))
        a("s_add_u32 s34, s33, %d" % (rt * 56 * 1024))
        a("buffer_store_dwordx2 %s, v5, s[8:11], s34 offen" % vr(t + 4, 2))
    a.label("%s_done" % name)
    a("s_endpgm")
    kernels.append((name, 224, 512, LDS_ST + 1024, 256, 48))


def gen_k4(a, layer):
    name = "k4l%d_kernel" % layer
    kbegin(a, name)
    a("s_cmp_ge_u32 s2, 224")
    a("s_cbranch_scc1 %s_done" % name)
    a("s_load_dwordx2 s[4:5], s[0:1], 64")
    a("s_load_dwordx2 s[6:7], s[0:1], 80")
    a("v_and_b32 v1, 63, v0")
    a("v_lshrrev_b32 v2, 6, v0")
    a("v_readfirstlane_b32 s3, v2")
    a("v_and_b32 v3, 15, v1")
    a("v_lshrrev_b32 v4, 4, v1")
    a("v_lshlrev_b32 v5, 4, v1")
    a("s_and_b32 s20, s2, 7")
    a("s_lshr_b32 s21, s2, 3")
    a("s_lshl_b32 s22, s20, 2")
    a("s_and_b32 s23, s21, 3")
    a("s_add_u32 s22, s22, s23")
    a("s_lshr_b32 s23, s21, 2")
    a("s_waitcnt lgkmcnt(0)")
    srd(a, 8, 6, 0, WS_TOTAL)
    srd(a, 12, 6, OFF_X1, SZ_X)
    if layer == 0:
        srd(a, 16, 6, OFF_X2, SZ_X)
    else:
        srd(a, 16, 4, 0, SZ_X)
    a("s_lshr_b32 s24, s3, 1")
    a("s_lshl_b32 s25, s22, 2")
    a("s_add_u32 s24, s24, s25")
    a("s_lshl_b32 s24, s24, 4")
    a("v_add_u32 v8, s24, v3")
    a("v_mul_u32_u24 v8, 896, v8")
    a("s_and_b32 s25, s3, 1")
    a("s_lshl_b32 s25, s25, 5")
    a("s_lshl_b32 s26, s23, 6")
    a("s_add_u32 s25, s25, s26")
    a("s_lshl_b32 s25, s25, 1")
    a("v_lshlrev_b32 v9, 3, v4")
    a("v_add3_u32 v8, v8, v9, s25")
    RES = 12
    a("buffer_load_dwordx2 v[12:13], v8, s[12:15], 0 offen")
    a("buffer_load_dwordx2 v[14:15], v8, s[12:15], 0 offen offset:32")
    a("s_mul_i32 s27, s3, 7")
    a("s_mul_i32 s28, s23, 224")
    a("s_add_u32 s28, s28, s27")
    a("s_lshl_b32 s28, s28, 10")
    a("s_add_u32 s28, s28, 0x%x" % OFF_WD)
    a("s_mul_i32 s29, s22, 224")
    a("s_add_u32 s29, s29, s27")
    a("s_lshl_b32 s29, s29, 10")
    a("s_add_u32 s29, s29, 0x%x" % OFF_H)
    for c in range(4):
        a("s_add_u32 s%d, s28, %d" % (32 + c, c * 56 * 1024))
        a("s_add_u32 s%d, s29, %d" % (36 + c, c * 56 * 1024))
        a("s_add_u32 s%d, s28, %d" % (40 + c, c * 56 * 1024 + 4096))
        a("s_add_u32 s%d, s29, %d" % (44 + c, c * 56 * 1024 + 4096))
    ACC = 16
    BUF = 80
    NST = 5

    def issue(i):
        st = BUF + (i % NST) * 32
        for c in range(4):
            sW = (32 if i < 4 else 40) + c
            a("buffer_load_dwordx4 %s, v5, s[8:11], s%d offen offset:%d" % (vr(st + c * 4, 4), sW, (i % 4) * 1024))
        for c in range(4):
            sH = (36 if i < 4 else 44) + c
            a("buffer_load_dwordx4 %s, v5, s[8:11], s%d offen offset:%d" % (vr(st + 16 + c * 4, 4), sH, (i % 4) * 1024))

    for i in range(NST):
        issue(i)
    for i in range(7):
        issued = min(7, NST + i)
        a("s_waitcnt vmcnt(%d)" % ((issued - i - 1) * 8))
        st = BUF + (i % NST) * 32
        for rt in range(4):
            for ct in range(4):
                d = vr(ACC + (rt * 4 + ct) * 4, 4)
                a("%s %s, %s, %s, %s" % (MF, d, vr(st + ct * 4, 4), vr(st + 16 + rt * 4, 4), "0" if i == 0 else d))
        if i + NST < 7:
            issue(i + NST)
    reduce_store(a, ACC, RES, 16, name)
    kernels.append((name, 224, 512, 131072, 240, 56))


def main():
    a = Asm()
    gen_prep(a)
    for layer in range(2):
        gen_k1(a, layer)
        gen_k2(a, layer)
        gen_k3(a, layer)
        gen_k4(a, layer)
    hdr = open("interleave_layers__linear_kernel_hedgehog__glu_gated_glu__prompt.s.ref").read().split("\n")
    head = [l for l in hdr if l.startswith(";") and "@launch" not in l and "Override launch" not in l and "grid=ceil" not in l]
    out = head[:]
    for (name, grid, block, lds, vg, sg) in kernels:
        out.append("; @launch kernel=%s grid=(%d,1,1) block=(%d,1,1) lds=%d" % (name, grid, block, lds))
    out.append('.amdgcn_target "amdgcn-amd-amdhsa--gfx950"')
    out.append(".text")
    out.append(a.text())
    out.append('.section .rodata,"a"')
    for (name, grid, block, lds, vg, sg) in kernels:
        out.append(".p2align 6")
        out.append(".amdhsa_kernel %s" % name)
        out.append("  .amdhsa_next_free_vgpr %d" % vg)
        out.append("  .amdhsa_next_free_sgpr %d" % sg)
        out.append("  .amdhsa_accum_offset %d" % ((vg + 3) // 4 * 4))
        out.append("  .amdhsa_group_segment_fixed_size 0")
        out.append("  .amdhsa_kernarg_size 88")
        out.append("  .amdhsa_user_sgpr_count 2")
        out.append("  .amdhsa_user_sgpr_kernarg_segment_ptr 1")
        out.append("  .amdhsa_system_sgpr_workgroup_id_x 1")
        out.append("  .amdhsa_float_denorm_mode_32 3")
        out.append(".end_amdhsa_kernel")
    dst = sys.argv[1] if len(sys.argv) > 1 else "interleave_layers__linear_kernel_hedgehog__glu_gated_glu__prompt.s"
    open(dst, "w").write("\n".join(out) + "\n")
    print("wrote", dst, "ws total", WS_TOTAL)


if __name__ == "__main__":
    main()
```

```python
import sys
import os
from asmlib import Asm, vr, sr

OFF_WQKV = 0
SZ_WQKV = 16 * 84 * 1024
OFF_CQKV = OFF_WQKV + SZ_WQKV
SZ_CQKV = 16 * 6 * 1024
OFF_WPHI = OFF_CQKV + SZ_CQKV
SZ_WPHI = 16 * 2 * 1024
OFF_WO = OFF_WPHI + SZ_WPHI
SZ_WO = 16 * 28 * 1024
OFF_WGU = OFF_WO + SZ_WO
SZ_WGU = 112 * 14 * 2 * 1024
OFF_CGU = OFF_WGU + SZ_WGU
SZ_CGU = 112 * 2 * 1024
OFF_WD = OFF_CGU + SZ_CGU
SZ_WD = 28 * 56 * 1024
OFF_KV = OFF_WD + SZ_WD
SZ_KV = 2 * 16 * 8192
OFF_PHIQ = OFF_KV + SZ_KV
SZ_PHIQ = 128 * 16 * 2 * 1024
SZ_X = 2048 * 448 * 2
OFF_X0 = OFF_PHIQ + SZ_PHIQ
OFF_X1 = OFF_X0 + SZ_X
OFF_X2 = OFF_X1 + SZ_X
SZ_ST = 128 * 14 * 128
OFF_ST0 = OFF_X2 + SZ_X
OFF_ST1 = OFF_ST0 + SZ_ST
OFF_ST2 = OFF_ST1 + SZ_ST
OFF_H = OFF_ST2 + SZ_ST
SZ_H = 128 * 56 * 1024
WS_TOTAL = OFF_H + SZ_H

OOB = 0x40000000
LOG2E = 0x3FB8AA3B
ONES_BF = 0x3F803F80
MF = "v_mfma_f32_16x16x32_bf16"

kernels = []
STAMP = int(os.environ.get("STAMP", "0"))
STF = os.environ.get("STF", "")
OFF_STAMP = 32 << 20
_nst = [0]


def stamp(a):
    if not STAMP:
        return
    i = _nst[0]
    a("s_memtime s[%d:%d]" % (60 + 2 * i, 61 + 2 * i))
    _nst[0] += 1


def stamp_flush(a, kidx, wsp):
    if not STAMP:
        return
    n = _nst[0]
    _nst[0] = 0
    a("s_waitcnt vmcnt(0) lgkmcnt(0)")
    a("s_cmp_ge_u32 s2, 8")
    a("s_cbranch_scc1 st_skip_%d" % kidx)
    srd(a, 92, wsp, OFF_STAMP + kidx * 16384, 16384)
    a("s_lshl_b32 s96, s2, 3")
    a("s_add_u32 s96, s96, s3")
    a("s_lshl_b32 s96, s96, 7")
    a("v_mov_b32 v1, 0")
    for i in range(n):
        a("v_mov_b32 v2, s%d" % (60 + 2 * i))
        a("buffer_store_dword v2, v1, s[92:95], s96 offen offset:%d" % (4 * i))
    a("s_waitcnt vmcnt(0)")
    a.label("st_skip_%d" % kidx)


class VM:
    def __init__(self, a):
        self.a = a
        self.q = []

    def issue(self, tag, text):
        self.a(text)
        self.q.append(tag)

    def count_after(self, tag):
        idx = max(i for i, t in enumerate(self.q) if t == tag)
        return len(self.q) - 1 - idx

    def wait(self, tag, extra=""):
        n = min(self.count_after(tag), 63)
        self.a(("s_waitcnt vmcnt(%d) " % n + extra).strip())


def kbegin(a, name):
    a.raw(".globl %s" % name)
    a.raw(".p2align 8")
    a.raw(".type %s,@function" % name)
    a.raw(name + ":")
    a.hist = []


def srd(a, d, p, off, size):
    if off:
        a("s_add_u32 s%d, s%d, 0x%x" % (d, p, off))
        a("s_addc_u32 s%d, s%d, 0" % (d + 1, p + 1))
        a("s_and_b32 s%d, s%d, 0xffff" % (d + 1, d + 1))
    else:
        a("s_mov_b32 s%d, s%d" % (d, p))
        a("s_and_b32 s%d, s%d, 0xffff" % (d + 1, p + 1))
    a("s_mov_b32 s%d, 0x%x" % (d + 2, size))
    a("s_mov_b32 s%d, 0x20000" % (d + 3))


def kmapD_slot(j):
    return j if j < 4 else 12 + j


def butterfly(a, regs, tmp, op):
    for swap in ("v_permlane16_swap_b32", "v_permlane32_swap_b32"):
        for r, t in zip(regs, tmp):
            a("v_mov_b32 v%d, v%d" % (t, r))
        for r, t in zip(regs, tmp):
            a("%s v%d, v%d" % (swap, r, t))
        for r, t in zip(regs, tmp):
            a("%s v%d, v%d, v%d" % (op, r, r, t))


def ln_finish(a, vsum, vsq, vmb, vrinv, t0, t1):
    a("v_mul_f32 v%d, 0x3b124925, v%d" % (vsum, vsum))
    a("v_mul_f32 v%d, 0x3b124925, v%d" % (vsq, vsq))
    a("v_fma_f32 v%d, -v%d, v%d, v%d" % (vsq, vsum, vsum, vsq))
    a("v_max_f32 v%d, 0, v%d" % (vsq, vsq))
    a("v_cvt_pk_bf16_f32 v%d, v%d, v%d" % (t0, vsum, vsq))
    a("v_lshlrev_b32 v%d, 16, v%d" % (vmb, t0))
    a("v_and_b32 v%d, 0xffff0000, v%d" % (t1, t0))
    a("v_add_f32 v%d, 0x3727c5ac, v%d" % (t1, t1))
    a("v_cvt_pk_bf16_f32 v%d, v%d, v%d" % (t0, t1, t1))
    a("v_lshlrev_b32 v%d, 16, v%d" % (t1, t0))
    a("v_sqrt_f32 v%d, v%d" % (t1, t1))
    a("v_cvt_pk_bf16_f32 v%d, v%d, v%d" % (t0, t1, t1))
    a("v_lshlrev_b32 v%d, 16, v%d" % (t1, t0))
    a("v_rcp_f32 v%d, v%d" % (vrinv, t1))


def stats_addr(a, vst, vst3, vl15, vg, vtmp):
    a("v_lshlrev_b32 v%d, 7, v%d" % (vst, vg))
    a("v_lshlrev_b32 v%d, 3, v%d" % (vtmp, vl15))
    a("v_add_u32 v%d, v%d, v%d" % (vst, vst, vtmp))
    a("v_mov_b32 v%d, 0x%x" % (vtmp, OOB))
    a("v_cmp_gt_u32 vcc, 2, v%d" % vg)
    a("v_cndmask_b32 v%d, v%d, v%d, vcc" % (vst3, vtmp, vst))


def stats_load(vm, tag, dst, vst, vst3, s_srd, s_off):
    for i in range(4):
        vm.issue(tag, "buffer_load_dwordx2 %s, v%d, %s, s%d offen offset:%d" % (vr(dst + 2 * i, 2), vst if i < 3 else vst3, sr(s_srd, 4), s_off, i * 512))


def stats_finish(a, src, vmb, vri, t0, t1):
    a("v_add_f32 v%d, v%d, v%d" % (src, src, src + 2))
    a("v_add_f32 v%d, v%d, v%d" % (src + 1, src + 1, src + 3))
    a("v_add_f32 v%d, v%d, v%d" % (src + 4, src + 4, src + 6))
    a("v_add_f32 v%d, v%d, v%d" % (src + 5, src + 5, src + 7))
    a("v_add_f32 v%d, v%d, v%d" % (src, src, src + 4))
    a("v_add_f32 v%d, v%d, v%d" % (src + 1, src + 1, src + 5))
    butterfly(a, [src, src + 1], [t0, t1], "v_add_f32")
    ln_finish(a, src, src + 1, vmb, vri, t0, t1)


def softmax_pair(a, P, T, outp, outm, sg3, vL):
    E = T[0:8]
    G = T[8:16]
    mx, mn, t0, t1 = T[16], T[17], T[18], T[19]
    for i in range(4):
        a("v_cvt_pk_bf16_f32 v%d, v%d, v%d" % (E[i], P[2 * i], P[2 * i + 1]))
    for i in range(4):
        a("v_lshlrev_b32 v%d, 16, v%d" % (P[2 * i], E[i]))
        a("v_and_b32 v%d, 0xffff0000, v%d" % (P[2 * i + 1], E[i]))
    a("v_max3_f32 v%d, v%d, v%d, v%d" % (t0, P[4], P[5], P[6]))
    a("v_min3_f32 v%d, v%d, v%d, v%d" % (t1, P[4], P[5], P[6]))
    a("v_max_f32 v%d, v%d, v%d" % (t0, t0, P[7]))
    a("v_min_f32 v%d, v%d, v%d" % (t1, t1, P[7]))
    a("v_cndmask_b32 v%d, v%d, v%d, %s" % (t0, t0, P[0], sg3))
    a("v_cndmask_b32 v%d, v%d, v%d, %s" % (t1, t1, P[0], sg3))
    a("v_max3_f32 v%d, v%d, v%d, v%d" % (mx, P[0], P[1], P[2]))
    a("v_min3_f32 v%d, v%d, v%d, v%d" % (mn, P[0], P[1], P[2]))
    a("v_max3_f32 v%d, v%d, v%d, v%d" % (mx, mx, P[3], t0))
    a("v_min3_f32 v%d, v%d, v%d, v%d" % (mn, mn, P[3], t1))
    for swap in ("v_permlane16_swap_b32", "v_permlane32_swap_b32"):
        a("v_mov_b32 v%d, v%d" % (t0, mx))
        a("v_mov_b32 v%d, v%d" % (t1, mn))
        a("%s v%d, v%d" % (swap, mx, t0))
        a("%s v%d, v%d" % (swap, mn, t1))
        a("v_max_f32 v%d, v%d, v%d" % (mx, mx, t0))
        a("v_min_f32 v%d, v%d, v%d" % (mn, mn, t1))
    a("v_mul_f32 v%d, v%d, v%d" % (mx, mx, vL))
    a("v_mul_f32 v%d, v%d, v%d" % (mn, mn, vL))
    for i in range(8):
        a("v_fma_f32 v%d, v%d, v%d, -v%d" % (E[i], P[i], vL, mx))
        a("v_fma_f32 v%d, -v%d, v%d, v%d" % (G[i], P[i], vL, mn))
    for i in range(8):
        a("v_exp_f32 v%d, v%d" % (E[i], E[i]))
        a("v_exp_f32 v%d, v%d" % (G[i], G[i]))
    for i in range(4, 8):
        a("v_cndmask_b32 v%d, v%d, 0, %s" % (E[i], E[i], sg3))
        a("v_cndmask_b32 v%d, v%d, 0, %s" % (G[i], G[i], sg3))
    sp, sm = mx, mn
    a("v_add_f32 v%d, v%d, v%d" % (sp, E[0], E[1]))
    a("v_add_f32 v%d, v%d, v%d" % (sm, G[0], G[1]))
    for i in range(2, 8):
        a("v_add_f32 v%d, v%d, v%d" % (sp, sp, E[i]))
        a("v_add_f32 v%d, v%d, v%d" % (sm, sm, G[i]))
    butterfly(a, [sp, sm], [t0, t1], "v_add_f32")
    a("v_rcp_f32 v%d, v%d" % (sp, sp))
    a("v_rcp_f32 v%d, v%d" % (sm, sm))
    for i in range(8):
        a("v_mul_f32 v%d, v%d, v%d" % (E[i], E[i], sp))
        a("v_mul_f32 v%d, v%d, v%d" % (G[i], G[i], sm))
    for i in range(4):
        a("v_cvt_pk_bf16_f32 v%d, v%d, v%d" % (outp + i, E[2 * i], E[2 * i + 1]))
        a("v_cvt_pk_bf16_f32 v%d, v%d, v%d" % (outm + i, G[2 * i], G[2 * i + 1]))


NPREP = 152


def gen_prep(a):
    name = "prep_kernel"
    kbegin(a, name)
    a("s_cmp_ge_u32 s2, %d" % NPREP)
    a("s_cbranch_scc1 prep_done")
    a("s_load_dwordx16 s[4:19], s[0:1], 0")
    a("s_load_dwordx2 s[20:21], s[0:1], 80")
    a("v_and_b32 v1, 63, v0")
    a("v_lshrrev_b32 v2, 6, v0")
    a("v_readfirstlane_b32 s3, v2")
    a("v_and_b32 v3, 15, v1")
    a("v_lshrrev_b32 v4, 4, v1")
    a("v_lshlrev_b32 v5, 4, v1")
    a("v_mov_b32 v6, 0x%x" % OOB)
    for i in range(4):
        a("v_mov_b32 v%d, 0x%x" % (8 + i, ONES_BF))
    a("v_cmp_eq_u32 s[40:41], 3, v4")
    a("s_waitcnt lgkmcnt(0)")
    srd(a, 24, 20, 0, WS_TOTAL)
    a("s_cmp_lt_u32 s2, 24")
    a("s_cbranch_scc1 prep_wqkv")
    a("s_cmp_lt_u32 s2, 80")
    a("s_cbranch_scc1 prep_wgu")
    a("s_cmp_lt_u32 s2, 108")
    a("s_cbranch_scc1 prep_wd")
    a("s_cmp_lt_u32 s2, 115")
    a("s_cbranch_scc1 prep_wo")
    a("s_cmp_lt_u32 s2, 116")
    a("s_cbranch_scc1 prep_wphi")
    a("s_cmp_lt_u32 s2, 120")
    a("s_cbranch_scc1 prep_zero")
    a("s_branch prep_x")

    FR = 32
    RAW = 100
    pend = []

    def gather(frag_idx, voffs, soffs):
        for j in range(8):
            a("s_mov_b32 s36, 0x%x" % soffs[j])
            a("buffer_load_ushort v%d, v%d, s[28:31], s36 offen" % (RAW + frag_idx * 8 + j, voffs[j]))
        pend.append(frag_idx)

    def pack():
        a("s_waitcnt vmcnt(0)")
        for f in pend:
            for i in range(4):
                a("v_lshl_or_b32 v%d, v%d, 16, v%d" % (FR + f * 4 + i, RAW + f * 8 + 2 * i + 1, RAW + f * 8 + 2 * i))
        del pend[:]

    def colsum_and_store(nfr, s_dst, dst_stride, s_cdst):
        pack()
        for i in range(nfr):
            a("%s v[12:15], %s, v[8:11], %s" % (MF, vr(FR + 4 * i, 4), "0" if i == 0 else "v[12:15]"))
        for i in range(nfr):
            a("s_add_u32 s37, s%d, 0x%x" % (s_dst, i * dst_stride))
            a("buffer_store_dwordx4 %s, v5, s[24:27], s37 offen" % vr(FR + 4 * i, 4))
        a("buffer_store_dwordx4 v[12:15], v5, s[24:27], s%d offen" % s_cdst)
        a("s_branch prep_done")

    a.label("prep_wqkv")
    srd(a, 28, 6, 0, 448 * 1344 * 2)
    a("s_lshl_b32 s32, s2, 2")
    a("s_add_u32 s32, s32, s3")
    a("s_lshr_b32 s33, s32, 4")
    a("s_and_b32 s34, s32, 15")
    a("s_lshr_b32 s35, s33, 1")
    a("s_mul_i32 s35, s35, 448")
    a("s_mul_i32 s38, s34, 28")
    a("s_add_u32 s35, s35, s38")
    a("s_and_b32 s38, s33, 1")
    a("s_lshl_b32 s38, s38, 4")
    a("s_add_u32 s35, s35, s38")
    a("s_sub_u32 s38, 28, s38")
    a("v_add_u32 v16, s35, v3")
    a("v_lshlrev_b32 v16, 1, v16")
    a("v_mul_u32_u24 v17, %d, v4" % (4 * 2688))
    a("v_add_u32 v16, v16, v17")
    a("v_cmp_gt_u32 vcc, s38, v3")
    a("v_cndmask_b32 v16, v6, v16, vcc")
    for ks in range(14):
        gather(ks, [16] * 8, [(32 * ks + kmapD_slot(j)) * 2688 for j in range(8)])
    a("s_mul_i32 s39, s34, 84")
    a("s_mul_i32 s42, s33, 14")
    a("s_add_u32 s39, s39, s42")
    a("s_lshl_b32 s39, s39, 10")
    a("s_add_u32 s39, s39, 0x%x" % OFF_WQKV)
    a("s_mul_i32 s42, s34, 6")
    a("s_add_u32 s42, s42, s33")
    a("s_lshl_b32 s42, s42, 10")
    a("s_add_u32 s42, s42, 0x%x" % OFF_CQKV)
    colsum_and_store(14, 39, 1024, 42)

    a.label("prep_wgu")
    a("s_sub_u32 s32, s2, 24")
    a("s_lshl_b32 s32, s32, 2")
    a("s_add_u32 s32, s32, s3")
    a("s_lshr_b32 s33, s32, 1")
    a("s_and_b32 s34, s32, 1")
    a("s_cmp_eq_u32 s34, 0")
    a("s_cselect_b32 s44, s14, s16")
    a("s_cselect_b32 s45, s15, s17")
    srd(a, 28, 44, 0, 448 * 1792 * 2)
    a("s_lshl_b32 s35, s33, 4")
    a("v_add_u32 v16, s35, v3")
    a("v_lshlrev_b32 v16, 1, v16")
    a("v_mul_u32_u24 v17, %d, v4" % (4 * 3584))
    a("v_add_u32 v16, v16, v17")
    for ks in range(14):
        gather(ks, [16] * 8, [(32 * ks + kmapD_slot(j)) * 3584 for j in range(8)])
    a("s_mul_i32 s39, s33, 28")
    a("s_add_u32 s39, s39, s34")
    a("s_lshl_b32 s39, s39, 10")
    a("s_add_u32 s39, s39, 0x%x" % OFF_WGU)
    a("s_lshl_b32 s42, s32, 10")
    a("s_add_u32 s42, s42, 0x%x" % OFF_CGU)
    colsum_and_store(14, 39, 2048, 42)

    a.label("prep_wd")
    srd(a, 28, 18, 0, 1792 * 448 * 2)
    a("s_sub_u32 s32, s2, 80")
    a("s_lshl_b32 s32, s32, 2")
    a("s_add_u32 s32, s32, s3")
    a("s_lshr_b32 s33, s32, 2")
    a("s_and_b32 s34, s32, 3")
    a("s_lshl_b32 s35, s33, 4")
    a("v_add_u32 v16, s35, v3")
    a("v_lshlrev_b32 v16, 1, v16")
    a("v_mul_u32_u24 v17, %d, v4" % (4 * 896))
    a("v_add_u32 v16, v16, v17")
    a("s_mul_i32 s35, s34, %d" % (14 * 32 * 896))
    a("v_add_u32 v16, s35, v16")
    for i in range(14):
        gather(i, [16] * 8, [(32 * i + kmapD_slot(j)) * 896 for j in range(8)])
    a("s_mul_i32 s39, s33, 56")
    a("s_mul_i32 s42, s34, 14")
    a("s_add_u32 s39, s39, s42")
    a("s_lshl_b32 s39, s39, 10")
    a("s_add_u32 s39, s39, 0x%x" % OFF_WD)
    pack()
    for i in range(14):
        a("s_add_u32 s37, s39, 0x%x" % (i * 1024))
        a("buffer_store_dwordx4 %s, v5, s[24:27], s37 offen" % vr(FR + 4 * i, 4))
    a("s_branch prep_done")

    a.label("prep_wo")
    srd(a, 28, 10, 0, 448 * 448 * 2)
    a("s_sub_u32 s32, s2, 108")
    a("s_lshl_b32 s32, s32, 2")
    a("s_add_u32 s32, s32, s3")
    a("s_lshl_b32 s35, s32, 4")
    a("v_add_u32 v16, s35, v3")
    a("v_lshlrev_b32 v16, 1, v16")
    a("v_mul_u32_u24 v17, %d, v4" % (4 * 896))
    a("v_add_u32 v16, v16, v17")
    a("v_cndmask_b32 v18, v16, v6, s[40:41]")
    for h in range(16):
        gather(h, [16] * 4 + [18] * 4, [(h * 28 + kmapD_slot(j)) * 896 for j in range(8)])
    a("s_lshl_b32 s39, s32, 10")
    a("s_add_u32 s39, s39, 0x%x" % OFF_WO)
    pack()
    for h in range(16):
        a("s_add_u32 s37, s39, 0x%x" % (h * 28 * 1024))
        a("buffer_store_dwordx4 %s, v5, s[24:27], s37 offen" % vr(FR + 4 * h, 4))
    a("s_branch prep_done")

    a.label("prep_wphi")
    srd(a, 28, 8, 0, 16 * 28 * 28 * 2)
    a("s_mul_i32 s35, s3, %d" % (4 * 1568))
    a("v_lshlrev_b32 v16, 1, v3")
    a("v_mul_u32_u24 v17, %d, v4" % (4 * 56))
    a("v_add_u32 v16, v16, v17")
    a("v_add_u32 v16, s35, v16")
    a("v_cndmask_b32 v18, v16, v6, s[40:41]")
    a("v_add_u32 v19, 32, v16")
    a("v_cmp_gt_u32 vcc, 12, v3")
    a("v_cndmask_b32 v19, v6, v19, vcc")
    a("v_cndmask_b32 v20, v19, v6, s[40:41]")
    for hh in range(4):
        for ft in range(2):
            vo = [16] * 4 + [18] * 4 if ft == 0 else [19] * 4 + [20] * 4
            gather(hh * 2 + ft, vo, [hh * 1568 + kmapD_slot(j) * 56 for j in range(8)])
    a("s_lshl_b32 s39, s3, 13")
    a("s_add_u32 s39, s39, 0x%x" % OFF_WPHI)
    pack()
    for i in range(8):
        a("s_add_u32 s37, s39, 0x%x" % (i * 1024))
        a("buffer_store_dwordx4 %s, v5, s[24:27], s37 offen" % vr(FR + 4 * i, 4))
    a("s_branch prep_done")

    a.label("prep_zero")
    a("s_sub_u32 s32, s2, 116")
    a("s_lshl_b32 s39, s32, 16")
    a("s_add_u32 s39, s39, 0x%x" % OFF_KV)
    a("v_lshlrev_b32 v16, 4, v0")
    for i in range(4):
        a("v_mov_b32 v%d, 0" % (12 + i))
    for i in range(16):
        a("s_add_u32 s37, s39, 0x%x" % (i * 4096))
        a("buffer_store_dwordx4 v[12:15], v16, s[24:27], s37 offen")
    a("s_branch prep_done")

    a.label("prep_x")
    srd(a, 28, 4, 0, SZ_X)
    a("s_sub_u32 s32, s2, 120")
    a("s_lshl_b32 s32, s32, 2")
    a("s_add_u32 s32, s32, s3")
    a("s_lshl_b32 s33, s32, 4")
    a("v_add_u32 v16, s33, v3")
    a("v_mul_u32_u24 v16, 896, v16")
    a("v_lshlrev_b32 v17, 3, v4")
    a("v_add_u32 v16, v16, v17")
    for ks in range(14):
        a("buffer_load_dwordx2 %s, v16, s[28:31], 0 offen offset:%d" % (vr(FR + 4 * ks, 2), ks * 64))
        a("buffer_load_dwordx2 %s, v16, s[28:31], 0 offen offset:%d" % (vr(FR + 4 * ks + 2, 2), ks * 64 + 32))
    a("s_mul_i32 s39, s32, %d" % (14 * 1024))
    a("s_add_u32 s39, s39, 0x%x" % OFF_X0)
    for i in range(4):
        a("v_mov_b32 v%d, 0" % (12 + i))
    a("s_waitcnt vmcnt(0)")
    for ks in range(14):
        a("s_add_u32 s37, s39, 0x%x" % (ks * 1024))
        a("buffer_store_dwordx4 %s, v5, s[24:27], s37 offen" % vr(FR + 4 * ks, 4))
    for ks in range(14):
        for r in range(4):
            x = FR + 4 * ks + r
            a("v_dot2c_f32_bf16 v%d, v%d, v8" % (12 + 2 * (r & 1), x))
            a("v_dot2c_f32_bf16 v%d, v%d, v%d" % (13 + 2 * (r & 1), x, x))
    a("v_add_f32 v12, v12, v14")
    a("v_add_f32 v13, v13, v15")
    butterfly(a, [12, 13], [14, 15], "v_add_f32")
    a("v_mov_b32 v14, 0")
    a("v_mov_b32 v15, 0")
    a("v_cmp_eq_u32 vcc, 0, v4")
    a("v_cndmask_b32 v12, 0, v12, vcc")
    a("v_cndmask_b32 v13, 0, v13, vcc")
    stats_addr(a, 18, 19, 3, 4, 17)
    a("s_mul_i32 s39, s32, %d" % (14 * 128))
    a("s_add_u32 s39, s39, 0x%x" % OFF_ST0)
    a("buffer_store_dwordx2 v[12:13], v18, s[24:27], s39 offen")
    a("buffer_store_dwordx2 v[14:15], v18, s[24:27], s39 offen offset:512")
    a("buffer_store_dwordx2 v[14:15], v18, s[24:27], s39 offen offset:1024")
    a("buffer_store_dwordx2 v[14:15], v19, s[24:27], s39 offen offset:1536")
    a.label("prep_done")
    a("s_endpgm")
    kernels.append((name, NPREP, 256, 0, 232, 48))


def gen_k1(a, layer):
    name = "k1l%d_kernel" % layer
    kbegin(a, name)
    vm = VM(a)
    LDS_RED = 86016
    OX, OST = (OFF_X0, OFF_ST0) if layer == 0 else (OFF_X2, OFF_ST2)
    a("s_cmp_ge_u32 s2, 256")
    a("s_cbranch_scc1 %s_done" % name)
    stamp(a)
    a("s_load_dwordx2 s[6:7], s[0:1], 80")
    a("v_and_b32 v1, 63, v0")
    a("v_lshrrev_b32 v2, 6, v0")
    a("v_readfirstlane_b32 s3, v2")
    a("v_and_b32 v3, 15, v1")
    a("v_lshrrev_b32 v4, 4, v1")
    a("v_lshlrev_b32 v5, 4, v1")
    a("v_cmp_eq_u32 s[40:41], 3, v4")
    stats_addr(a, 6, 7, 3, 4, 8)
    a("s_and_b32 s20, s2, 7")
    a("s_lshr_b32 s21, s2, 3")
    a("s_and_b32 s22, s20, 3")
    a("s_lshl_b32 s22, s22, 2")
    a("s_and_b32 s23, s21, 3")
    a("s_add_u32 s22, s22, s23")
    a("s_lshr_b32 s23, s20, 2")
    a("s_lshl_b32 s23, s23, 3")
    a("s_lshr_b32 s24, s21, 2")
    a("s_add_u32 s23, s23, s24")
    a("s_lshl_b32 s24, s22, 3")
    a("s_lshl_b32 s25, s3, 1")
    a("s_add_u32 s24, s24, s25")
    a("s_waitcnt lgkmcnt(0)")
    srd(a, 8, 6, 0, WS_TOTAL)
    X = 16
    a("s_mul_i32 s25, s24, %d" % (14 * 1024))
    a("s_add_u32 s25, s25, 0x%x" % OX)
    for c in range(7):
        a("s_add_u32 s%d, s25, %d" % (44 + c, c * 4096))
    for ks in range(14):
        for rt in range(2):
            f = rt * 14 + ks
            vm.issue("x", "buffer_load_dwordx4 %s, v5, s[8:11], s%d offen offset:%d" % (vr(X + f * 4, 4), 44 + f // 4, (f % 4) * 1024))
    a("s_mul_i32 s26, s23, 86016")
    a("s_add_u32 s26, s26, 0x%x" % OFF_WQKV)
    a("s_mul_i32 s27, s3, %d" % (21 * 1024))
    a("s_add_u32 s26, s26, s27")
    for c in range(6):
        n = min(4, 21 - 4 * c)
        a("s_add_u32 s28, s27, %d" % (c * 4096))
        a("s_mov_b32 m0, s28")
        a("s_add_u32 s29, s26, %d" % (c * 4096))
        for i in range(n):
            vm.issue("dma", "buffer_load_dwordx4 v5, s[8:11], s29 offen offset:%d lds" % (i * 1024))
    T = 236
    a("s_mul_i32 s30, s24, %d" % (14 * 128))
    a("s_add_u32 s30, s30, 0x%x" % OST)
    a("s_add_u32 s31, s30, %d" % (14 * 128))
    stats_load(vm, "st", T, 6, 7, 8, 30)
    stats_load(vm, "st", T + 8, 6, 7, 8, 31)
    CS = 192
    a("s_mul_i32 s30, s23, 6144")
    a("s_add_u32 s30, s30, 0x%x" % OFF_CQKV)
    a("s_add_u32 s31, s30, 4096")
    for ct in range(6):
        vm.issue("cs", "buffer_load_dwordx4 %s, v5, s[8:11], s%d offen offset:%d" % (vr(CS + 4 * ct, 4), 30 if ct < 4 else 31, (ct % 4) * 1024))
    WP = 216
    a("s_lshl_b32 s32, s23, 11")
    a("s_add_u32 s32, s32, 0x%x" % OFF_WPHI)
    for ft in range(2):
        vm.issue("cs", "buffer_load_dwordx4 %s, v5, s[8:11], s32 offen offset:%d" % (vr(WP + 4 * ft, 4), ft * 1024))
    ID = 224
    VL = 230
    MB = 232
    RI = 234
    a("v_mov_b32 v%d, 0x%x" % (VL, LOG2E))
    for i in (0, 1, 4, 5):
        a("v_mov_b32 v%d, 0" % (ID + i))
    a("v_lshrrev_b32 v8, 2, v3")
    a("v_cmp_eq_u32 vcc, v8, v4")
    a("v_and_b32 v9, 3, v3")
    a("v_and_b32 v10, 1, v9")
    a("v_lshlrev_b32 v10, 4, v10")
    a("v_mov_b32 v11, 0x3f80")
    a("v_lshlrev_b32 v11, v10, v11")
    a("v_cndmask_b32 v11, 0, v11, vcc")
    a("v_cmp_gt_u32 vcc, 2, v9")
    a("v_cndmask_b32 v%d, 0, v11, vcc" % (ID + 2))
    a("v_cndmask_b32 v%d, v11, 0, vcc" % (ID + 3))
    a("v_add_u32 v8, 57344, v5")
    vm.wait("dma")
    stamp(a)
    a("s_barrier")
    stamp(a)
    WB = 128
    ACC = 160

    def lds_frag(dst, ct, ks):
        off = (ct * 14 + ks) * 1024
        if off < 57344:
            a("ds_read_b128 %s, v5 offset:%d" % (vr(dst, 4), off))
        else:
            a("ds_read_b128 %s, v8 offset:%d" % (vr(dst, 4), off - 57344))

    def gemm(cts, wb, acc):
        n = len(cts)
        for ci, ct in enumerate(cts):
            lds_frag(wb + ci * 4, ct, 0)
        for ks in range(14):
            cur = wb + (ks & 1) * 4 * n
            nxt = wb + ((ks + 1) & 1) * 4 * n
            if ks < 13:
                for ci, ct in enumerate(cts):
                    lds_frag(nxt + ci * 4, ct, ks + 1)
                a("s_waitcnt lgkmcnt(%d)" % n)
            else:
                a("s_waitcnt lgkmcnt(0)")
            for ci in range(n):
                for rt in range(2):
                    d = vr(acc + (ci * 2 + rt) * 4, 4)
                    a("%s %s, %s, %s, %s" % (MF, d, vr(cur + ci * 4, 4), vr(X + (rt * 14 + ks) * 4, 4), "0" if ks == 0 else d))

    def ln_apply(acc, ci, ct, rt, dst2):
        b = acc + (ci * 2 + rt) * 4
        for r in range(4):
            a("v_fma_f32 v%d, -v%d, v%d, v%d" % (b + r, MB + rt, CS + ct * 4 + r, b + r))
        for r in range(4):
            a("v_mul_f32 v%d, v%d, v%d" % (b + r, b + r, RI + rt))
        a("v_cvt_pk_bf16_f32 v%d, v%d, v%d" % (dst2, b, b + 1))
        a("v_cvt_pk_bf16_f32 v%d, v%d, v%d" % (dst2 + 1, b + 2, b + 3))

    gemm([2, 3, 4, 5], WB, ACC)
    stamp(a)
    vm.wait("cs")
    for rt in range(2):
        stats_finish(a, T + 8 * rt, MB + rt, RI + rt, 9, 10)
    KF, VF = 128, 136
    a("v_mov_b32 v9, 0x3f80")
    for rt in range(2):
        ln_apply(ACC, 0, 2, rt, KF + 4 * rt)
        ln_apply(ACC, 1, 3, rt, KF + 4 * rt + 2)
        ln_apply(ACC, 2, 4, rt, VF + 4 * rt)
        ln_apply(ACC, 3, 5, rt, VF + 4 * rt + 2)
        a("v_cndmask_b32 v%d, v%d, v9, s[40:41]" % (VF + 4 * rt + 2, VF + 4 * rt + 2))
    for rt in range(2):
        for ft in range(2):
            a("%s %s, %s, %s, 0" % (MF, vr(ACC + rt * 8 + ft * 4, 4), vr(WP + 4 * ft, 4), vr(KF + 4 * rt, 4)))
    PH = 144
    TT = list(range(236, 256))
    for rt in range(2):
        softmax_pair(a, [ACC + rt * 8 + i for i in range(8)], TT, PH + rt * 8, PH + rt * 8 + 4, "s[40:41]", VL)
    PKT = ACC + 16
    VT = 236
    srcs = []
    for rt in range(2):
        for b in range(2):
            for t in range(2):
                srcs.append((PH + rt * 8 + 4 * b, t, PKT + (2 * b + t) * 4 + 2 * rt))
        for t in range(2):
            srcs.append((VF + 4 * rt, t, VT + t * 4 + 2 * rt))
    for grp in range(0, 12, 4):
        for i, (src, t, dst) in enumerate(srcs[grp:grp + 4]):
            idr = vr(ID + 2, 4) if t == 0 else vr(ID, 4)
            a("%s %s, %s, %s, 0" % (MF, vr(ACC + 4 * i, 4), vr(src, 4), idr))
        for i, (src, t, dst) in enumerate(srcs[grp:grp + 4]):
            a("v_cvt_pk_bf16_f32 v%d, v%d, v%d" % (dst, ACC + 4 * i, ACC + 4 * i + 1))
            a("v_cvt_pk_bf16_f32 v%d, v%d, v%d" % (dst + 1, ACC + 4 * i + 2, ACC + 4 * i + 3))
    KVR = 128
    for ft in range(4):
        for dt in range(2):
            a("%s %s, %s, %s, 0" % (MF, vr(KVR + (ft * 2 + dt) * 4, 4), vr(PKT + 4 * ft, 4), vr(VT + 4 * dt, 4)))
    stamp(a)
    a("s_lshl_b32 s33, s3, 13")
    a("s_add_u32 s33, s33, %d" % LDS_RED)
    a("v_add_u32 v9, s33, v5")
    for t in range(8):
        a("ds_write_b128 v9, %s offset:%d" % (vr(KVR + 4 * t, 4), t * 1024))
    a("s_waitcnt lgkmcnt(0)")
    a("s_barrier")
    RD = ACC
    a("s_lshl_b32 s33, s3, 11")
    a("s_add_u32 s33, s33, %d" % LDS_RED)
    a("v_lshlrev_b32 v9, 2, v1")
    a("v_add_u32 v10, s33, v9")
    for w in range(4):
        for t in range(2):
            for i in range(4):
                a("ds_read_b32 v%d, v10 offset:%d" % (RD + (w * 2 + t) * 4 + i, w * 8192 + t * 1024 + i * 256))
    a("s_lshl_b32 s33, s23, 13")
    a("s_add_u32 s33, s33, 0x%x" % (OFF_KV + layer * 131072))
    a("s_lshl_b32 s34, s3, 11")
    a("s_add_u32 s33, s33, s34")
    a("s_waitcnt lgkmcnt(0)")
    AT = 244
    for t in range(2):
        for r in range(4):
            d = RD + t * 4 + r
            a("v_add_f32 v%d, v%d, v%d" % (d, d, d + 8))
            a("v_add_f32 v%d, v%d, v%d" % (d + 16, d + 16, d + 24))
            a("v_add_f32 v%d, v%d, v%d" % (AT + t * 4 + r, d, d + 16))
    for t in range(2):
        for r in range(4):
            a("buffer_atomic_add_f32 v%d, v9, s[8:11], s33 offen offset:%d" % (AT + t * 4 + r, t * 1024 + r * 256))
    stamp(a)
    gemm([0, 1], WB, ACC)
    stamp(a)
    QF = 144
    for rt in range(2):
        ln_apply(ACC, 0, 0, rt, QF + 4 * rt)
        ln_apply(ACC, 1, 1, rt, QF + 4 * rt + 2)
    PQ = ACC + 16
    for rt in range(2):
        for ft in range(2):
            a("%s %s, %s, %s, 0" % (MF, vr(PQ + rt * 8 + ft * 4, 4), vr(WP + 4 * ft, 4), vr(QF + 4 * rt, 4)))
    PH = 128
    TT2 = list(range(200, 216)) + [236, 237, 238, 239]
    for rt in range(2):
        softmax_pair(a, [PQ + rt * 8 + i for i in range(8)], TT2, PH + rt * 8, PH + rt * 8 + 4, "s[40:41]", VL)
    a("s_lshl_b32 s33, s24, 4")
    a("s_add_u32 s33, s33, s23")
    a("s_lshl_b32 s33, s33, 11")
    a("s_add_u32 s33, s33, 0x%x" % OFF_PHIQ)
    a("s_add_u32 s34, s33, 32768")
    for rt in range(2):
        for b in range(2):
            a("buffer_store_dwordx4 %s, v5, s[8:11], s%d offen offset:%d%s" % (vr(PH + rt * 8 + 4 * b, 4), 33 + rt, b * 1024, STF))
    stamp(a)
    stamp_flush(a, 1 + 4 * layer, 6)
    a.label("%s_done" % name)
    a("s_endpgm")
    kernels.append((name, 256, 256, LDS_RED + 32768, 256, 56))


def tile_prologue(a):
    a("v_and_b32 v1, 63, v0")
    a("v_lshrrev_b32 v2, 6, v0")
    a("v_readfirstlane_b32 s3, v2")
    a("v_and_b32 v3, 15, v1")
    a("v_lshrrev_b32 v4, 4, v1")
    a("v_lshlrev_b32 v5, 4, v1")
    a("s_and_b32 s20, s2, 7")
    a("s_lshr_b32 s21, s2, 3")
    a("s_lshl_b32 s22, s20, 2")
    a("s_and_b32 s23, s21, 3")
    a("s_add_u32 s22, s22, s23")
    a("s_lshr_b32 s23, s21, 2")
    a("s_lshr_b32 s24, s3, 1")
    a("s_lshl_b32 s25, s22, 2")
    a("s_add_u32 s24, s24, s25")
    a("s_and_b32 s25, s3, 1")
    a("s_lshl_b32 s26, s23, 1")
    a("s_add_u32 s25, s25, s26")
    a("s_mul_i32 s26, s24, 14")
    a("s_add_u32 s26, s26, s25")


def reduce_store(a, vm, ACC, RES, name, kidx, off_out, off_st, final):
    a("s_lshl_b32 s33, s3, 14")
    a("v_add_u32 v9, s33, v5")
    for t in range(16):
        a("ds_write_b128 v9, %s offset:%d" % (vr(ACC + 4 * t, 4), t * 1024))
    a("s_lshl_b32 s33, s3, 11")
    a("v_add_u32 v9, s33, v5")
    a("v_add_u32 v10, 0x10000, v9")
    if final:
        a("s_lshl_b32 s34, s24, 4")
        a("v_add_u32 v8, s34, v3")
        a("v_mul_u32_u24 v8, 896, v8")
        a("s_lshl_b32 s34, s25, 6")
        a("v_lshlrev_b32 v11, 3, v4")
        a("v_add3_u32 v8, v8, v11, s34")
    else:
        a("s_lshl_b32 s34, s26, 10")
        a("s_add_u32 s34, s34, 0x%x" % off_out)
        a("s_lshl_b32 s35, s26, 7")
        a("s_add_u32 s35, s35, 0x%x" % off_st)
        a("v_lshlrev_b32 v8, 3, v3")
        a("v_mov_b32 v11, 0x%x" % ONES_BF)
    a("s_waitcnt lgkmcnt(0)")
    a("s_barrier")
    stamp(a)
    for w in range(8):
        for t in range(2):
            base = 9 if w < 4 else 10
            a("ds_read_b128 %s, v%d offset:%d" % (vr(ACC + (w * 2 + t) * 4, 4), base, (w & 3) * 16384 + t * 1024))
    a("s_waitcnt lgkmcnt(8)")
    for base in range(0, 16, 8):
        for i in range(8):
            d = ACC + base + i
            a("v_add_f32 v%d, v%d, v%d" % (d, d, d + 16))
    a("s_waitcnt lgkmcnt(0)")
    for base in range(32, 48, 8):
        for i in range(8):
            d = ACC + base + i
            a("v_add_f32 v%d, v%d, v%d" % (d, d, d + 16))
    for i in range(8):
        a("v_add_f32 v%d, v%d, v%d" % (ACC + i, ACC + i, ACC + 8 + i))
        a("v_add_f32 v%d, v%d, v%d" % (ACC + 32 + i, ACC + 32 + i, ACC + 40 + i))
    for i in range(8):
        a("v_add_f32 v%d, v%d, v%d" % (ACC + i, ACC + i, ACC + 32 + i))
    vm.wait("res")
    o = ACC + 8
    e = ACC + 16
    for i in range(4):
        a("v_cvt_pk_bf16_f32 v%d, v%d, v%d" % (o + i, ACC + 2 * i, ACC + 2 * i + 1))
    for i in range(4):
        a("v_lshlrev_b32 v%d, 16, v%d" % (ACC + 2 * i, o + i))
        a("v_and_b32 v%d, 0xffff0000, v%d" % (ACC + 2 * i + 1, o + i))
        a("v_lshlrev_b32 v%d, 16, v%d" % (e + 2 * i, RES + i))
        a("v_and_b32 v%d, 0xffff0000, v%d" % (e + 2 * i + 1, RES + i))
    for i in range(8):
        a("v_add_f32 v%d, v%d, v%d" % (ACC + i, ACC + i, e + i))
    for i in range(4):
        a("v_cvt_pk_bf16_f32 v%d, v%d, v%d" % (o + i, ACC + 2 * i, ACC + 2 * i + 1))
    if final:
        a("buffer_store_dwordx2 %s, v8, s[16:19], 0 offen" % vr(o, 2))
        a("buffer_store_dwordx2 %s, v8, s[16:19], 0 offen offset:32" % vr(o + 2, 2))
    else:
        a("buffer_store_dwordx4 %s, v5, s[8:11], s34 offen%s" % (vr(o, 4), STF))
        s = ACC + 24
        a("v_mov_b32 v%d, 0" % s)
        a("v_mov_b32 v%d, 0" % (s + 1))
        for i in range(4):
            a("v_dot2c_f32_bf16 v%d, v%d, v11" % (s, o + i))
            a("v_dot2c_f32_bf16 v%d, v%d, v%d" % (s + 1, o + i, o + i))
        butterfly(a, [s, s + 1], [s + 2, s + 3], "v_add_f32")
        a("buffer_store_dwordx2 %s, v8, s[8:11], s35 offen" % vr(s, 2))
    stamp(a)
    stamp_flush(a, kidx, 6)
    a.label("%s_done" % name)
    a("s_endpgm")


def gen_k2(a, layer):
    name = "k2l%d_kernel" % layer
    kbegin(a, name)
    vm = VM(a)
    OX = OFF_X0 if layer == 0 else OFF_X2
    a("s_cmp_ge_u32 s2, 224")
    a("s_cbranch_scc1 %s_done" % name)
    stamp(a)
    a("s_load_dwordx2 s[6:7], s[0:1], 80")
    tile_prologue(a)
    a("v_lshlrev_b32 v6, 2, v1")
    a("v_cmp_eq_u32 s[40:41], 3, v4")
    a("s_waitcnt lgkmcnt(0)")
    srd(a, 8, 6, 0, WS_TOTAL)
    ACC = 16
    RES = 12

    def HB(hh):
        return 80 + hh * 80

    for hh in range(2):
        hb = HB(hh)
        a("s_lshl_b32 s27, s3, 1")
        a("s_add_u32 s27, s27, %d" % hh)
        a("s_lshl_b32 s28, s27, 13")
        a("s_add_u32 s28, s28, 0x%x" % (OFF_KV + layer * 131072))
        a("s_add_u32 s29, s28, 4096")
        for b in range(2):
            for dt in range(2):
                for hf in range(2):
                    ft = 2 * b + hf
                    vm.issue("kv%d" % hh, "buffer_load_dwordx4 %s, v5, s[8:11], s%d offen offset:%d" % (vr(hb + (b * 2 + dt) * 8 + hf * 4, 4), 28 + b, (hf * 2 + dt) * 1024))
        a("s_lshl_b32 s30, s22, 6")
        a("s_add_u32 s30, s30, s27")
        a("s_lshl_b32 s30, s30, 11")
        a("s_add_u32 s30, s30, 0x%x" % OFF_PHIQ)
        for rt in range(4):
            a("s_add_u32 s31, s30, %d" % (rt * 32768))
            for b in range(2):
                vm.issue("pq%d_%d" % (hh, rt), "buffer_load_dwordx4 %s, v5, s[8:11], s31 offen offset:%d" % (vr(hb + 32 + (rt * 2 + b) * 4, 4), b * 1024))
        a("s_mul_i32 s30, s27, 28")
        a("s_lshl_b32 s31, s23, 2")
        a("s_add_u32 s30, s30, s31")
        a("s_lshl_b32 s30, s30, 10")
        a("s_add_u32 s30, s30, 0x%x" % OFF_WO)
        for ct in range(4):
            vm.issue("wo%d" % hh, "buffer_load_dwordx4 %s, v5, s[8:11], s30 offen offset:%d" % (vr(hb + 64 + ct * 4, 4), ct * 1024))
    a("s_lshl_b32 s30, s26, 10")
    a("s_add_u32 s30, s30, 0x%x" % OX)
    vm.issue("res", "buffer_load_dwordx4 v[12:15], v5, s[8:11], s30 offen")
    OF = 248
    DN = 252
    for hh in range(2):
        hb = HB(hh)
        vm.wait("kv%d" % hh)
        stamp(a)
        for i in range(16):
            a("v_cvt_pk_bf16_f32 v%d, v%d, v%d" % (hb + i, hb + 2 * i, hb + 2 * i + 1))

        def num_mfma(rt):
            nb = hb + 16 + (rt & 1) * 8
            vm.wait("pq%d_%d" % (hh, rt))
            for dt in range(2):
                for b in range(2):
                    d = vr(nb + dt * 4, 4)
                    a("%s %s, %s, %s, %s" % (MF, d, vr(hb + (b * 2 + dt) * 4, 4), vr(hb + 32 + (rt * 2 + b) * 4, 4), "0" if b == 0 else d))

        num_mfma(0)
        for rt in range(4):
            if rt < 3:
                num_mfma(rt + 1)
            nb = hb + 16 + (rt & 1) * 8
            a("v_cndmask_b32 v%d, 0, v%d, s[40:41]" % (DN, nb + 4))
            butterfly(a, [DN], [DN + 1], "v_add_f32")
            a("v_cvt_pk_bf16_f32 v%d, v%d, v%d" % (DN + 1, DN, DN))
            a("v_lshlrev_b32 v%d, 16, v%d" % (DN, DN + 1))
            a("v_add_f32 v%d, 0x358637bd, v%d" % (DN, DN))
            a("v_cvt_pk_bf16_f32 v%d, v%d, v%d" % (DN + 1, DN, DN))
            a("v_lshlrev_b32 v%d, 16, v%d" % (DN, DN + 1))
            a("v_rcp_f32 v%d, v%d" % (DN, DN))
            for i in range(4):
                a("v_cvt_pk_bf16_f32 v%d, v%d, v%d" % (OF + i, nb + 2 * i, nb + 2 * i + 1))
            for i in range(4):
                a("v_lshlrev_b32 v%d, 16, v%d" % (nb + 2 * i, OF + i))
                a("v_and_b32 v%d, 0xffff0000, v%d" % (nb + 2 * i + 1, OF + i))
            for i in range(8):
                a("v_mul_f32 v%d, v%d, v%d" % (nb + i, nb + i, DN))
            of = 240 + (rt & 1) * 4
            for i in range(4):
                a("v_cvt_pk_bf16_f32 v%d, v%d, v%d" % (of + i, nb + 2 * i, nb + 2 * i + 1))
            if rt == 0:
                vm.wait("wo%d" % hh)
            for ct in range(4):
                d = vr(ACC + (rt * 4 + ct) * 4, 4)
                a("%s %s, %s, %s, %s" % (MF, d, vr(hb + 64 + ct * 4, 4), vr(of, 4), "0" if hh == 0 else d))
    stamp(a)
    reduce_store(a, vm, ACC, RES, name, 2 + 4 * layer, OFF_X1, OFF_ST1, False)
    kernels.append((name, 224, 512, 131072, 256, 56))


def gen_k3(a, layer):
    name = "k3l%d_kernel" % layer
    kbegin(a, name)
    vm = VM(a)
    LDS_ST = 112 * 1024
    PF = 4
    a("s_cmp_ge_u32 s2, 224")
    a("s_cbranch_scc1 %s_done" % name)
    stamp(a)
    a("s_load_dwordx2 s[6:7], s[0:1], 80")
    a("v_and_b32 v1, 63, v0")
    a("v_lshrrev_b32 v2, 6, v0")
    a("v_readfirstlane_b32 s3, v2")
    a("v_and_b32 v3, 15, v1")
    a("v_lshrrev_b32 v4, 4, v1")
    a("v_lshlrev_b32 v5, 4, v1")
    stats_addr(a, 6, 7, 3, 4, 2)
    a("s_and_b32 s20, s2, 7")
    a("s_lshr_b32 s21, s2, 3")
    a("s_and_b32 s22, s20, 3")
    a("s_lshl_b32 s22, s22, 2")
    a("s_and_b32 s23, s21, 3")
    a("s_add_u32 s22, s22, s23")
    a("s_lshr_b32 s23, s20, 2")
    a("s_mul_i32 s23, s23, 7")
    a("s_lshr_b32 s24, s21, 2")
    a("s_add_u32 s23, s23, s24")
    a("s_lshl_b32 s23, s23, 3")
    a("s_add_u32 s23, s23, s3")
    a("s_lshl_b32 s24, s22, 3")
    a("s_add_u32 s24, s24, s3")
    a("s_waitcnt lgkmcnt(0)")
    srd(a, 8, 6, 0, WS_TOTAL)
    a("s_mul_i32 s26, s3, %d" % (14 * 1024))
    a("s_mul_i32 s27, s24, %d" % (14 * 1024))
    a("s_add_u32 s27, s27, 0x%x" % OFF_X1)
    for c in range(4):
        n = min(4, 14 - 4 * c)
        a("s_add_u32 s28, s26, %d" % (c * 4096))
        a("s_mov_b32 m0, s28")
        a("s_add_u32 s29, s27, %d" % (c * 4096))
        for i in range(n):
            vm.issue("dma", "buffer_load_dwordx4 v5, s[8:11], s29 offen offset:%d lds" % (i * 1024))
    a("s_barrier")
    W = 136
    ACC = 8
    XB = 72
    CS = 248
    a("s_mul_i32 s29, s23, %d" % (28 * 1024))
    a("s_add_u32 s29, s29, 0x%x" % OFF_WGU)
    for c in range(7):
        a("s_add_u32 s%d, s29, %d" % (44 + c, c * 4096))

    def wload(ks):
        for mat in range(2):
            vm.issue("w%d" % ks, "buffer_load_dwordx4 %s, v5, s[8:11], s%d offen offset:%d" % (vr(W + (ks * 2 + mat) * 4, 4), 44 + ks // 2, ((ks & 1) * 2 + mat) * 1024))

    S = ACC
    a("s_mul_i32 s30, s24, %d" % (14 * 128))
    a("s_add_u32 s30, s30, 0x%x" % OFF_ST1)
    stats_load(vm, "st", S, 6, 7, 8, 30)
    for ks in range(PF):
        wload(ks)
    a("s_lshl_b32 s31, s23, 11")
    a("s_add_u32 s31, s31, 0x%x" % OFF_CGU)
    vm.issue("cs", "buffer_load_dwordx4 v[248:251], v5, s[8:11], s31 offen")
    vm.issue("cs", "buffer_load_dwordx4 v[252:255], v5, s[8:11], s31 offen offset:1024")
    a("v_add_u32 v6, 57344, v5")
    vm.wait("st")
    stats_finish(a, S, S + 10, S + 11, S + 8, S + 9)
    a("s_lshl_b32 s33, s3, 7")
    a("s_add_u32 s33, s33, %d" % LDS_ST)
    a("v_lshlrev_b32 v2, 3, v3")
    a("v_add_u32 v2, s33, v2")
    a("ds_write_b64 v2, %s" % vr(S + 10, 2))
    a("s_waitcnt lgkmcnt(0)")
    stamp(a)
    a("s_barrier")
    stamp(a)

    def xfrag(dst, rt, ks):
        off = (rt * 14 + ks) * 1024
        if off < 57344:
            a("ds_read_b128 %s, v5 offset:%d" % (vr(dst, 4), off))
        else:
            a("ds_read_b128 %s, v6 offset:%d" % (vr(dst, 4), off - 57344))

    for rt in range(8):
        xfrag(XB + rt * 4, rt, 0)
    for ks in range(14):
        cur = XB + (ks & 1) * 32
        nxt = XB + ((ks + 1) & 1) * 32
        if ks + PF < 14:
            wload(ks + PF)
        if ks < 13:
            for rt in range(8):
                xfrag(nxt + rt * 4, rt, ks + 1)
            vm.wait("w%d" % ks, "lgkmcnt(8)")
        else:
            vm.wait("w%d" % ks, "lgkmcnt(0)")
        for rt in range(8):
            for mat in range(2):
                d = vr(ACC + (rt * 2 + mat) * 4, 4)
                a("%s %s, %s, %s, %s" % (MF, d, vr(W + (ks * 2 + mat) * 4, 4), vr(cur + rt * 4, 4), "0" if ks == 0 else d))
    stamp(a)
    a("v_lshlrev_b32 v2, 3, v3")
    a("v_add_u32 v2, %d, v2" % LDS_ST)
    for rt in range(8):
        a("ds_read_b64 %s, v2 offset:%d" % (vr(XB + 2 * rt, 2), rt * 128))
    a("s_mul_i32 s33, s22, %d" % (8 * 56))
    a("s_lshr_b32 s34, s23, 1")
    a("s_add_u32 s33, s33, s34")
    a("s_lshl_b32 s33, s33, 10")
    a("s_and_b32 s34, s23, 1")
    a("s_lshl_b32 s34, s34, 3")
    a("s_add_u32 s33, s33, s34")
    a("s_add_u32 s33, s33, 0x%x" % OFF_H)
    a("v_mov_b32 v7, 0xbfb8aa3b")
    a("s_waitcnt vmcnt(0) lgkmcnt(0)")
    T = XB + 16
    for rt in range(8):
        mb, ri = XB + 2 * rt, XB + 2 * rt + 1
        g = ACC + rt * 8
        u = g + 4
        t = T + (rt & 1) * 8
        for (b, c) in ((g, CS), (u, CS + 4)):
            for r in range(4):
                a("v_fma_f32 v%d, -v%d, v%d, v%d" % (b + r, mb, c + r, b + r))
            for r in range(4):
                a("v_mul_f32 v%d, v%d, v%d" % (b + r, b + r, ri))
        for i in range(4):
            a("v_cvt_pk_bf16_f32 v%d, v%d, v%d" % (t + i, g + 2 * i, g + 2 * i + 1))
        for i in range(4):
            a("v_lshlrev_b32 v%d, 16, v%d" % (g + 2 * i, t + i))
            a("v_and_b32 v%d, 0xffff0000, v%d" % (g + 2 * i + 1, t + i))
        for r in range(4):
            a("v_mul_f32 v%d, v%d, v7" % (g + r, g + r))
        for r in range(4):
            a("v_exp_f32 v%d, v%d" % (g + r, g + r))
        for r in range(4):
            a("v_add_f32 v%d, 1.0, v%d" % (g + r, g + r))
        for r in range(4):
            a("v_rcp_f32 v%d, v%d" % (g + r, g + r))
        for i in range(2):
            a("v_cvt_pk_bf16_f32 v%d, v%d, v%d" % (t + i, g + 2 * i, g + 2 * i + 1))
        for i in range(2):
            a("v_lshlrev_b32 v%d, 16, v%d" % (g + 2 * i, t + i))
            a("v_and_b32 v%d, 0xffff0000, v%d" % (g + 2 * i + 1, t + i))
        for r in range(4):
            a("v_mul_f32 v%d, v%d, v%d" % (g + r, g + r, u + r))
        a("v_cvt_pk_bf16_f32 v%d, v%d, v%d" % (t + 4, g, g + 1))
        a("v_cvt_pk_bf16_f32 v%d, v%d, v%d" % (t + 5, g + 2, g + 3))
        a("s_add_u32 s34, s33, %d" % (rt * 56 * 1024))
        a("buffer_store_dwordx2 %s, v5, s[8:11], s34 offen%s" % (vr(t + 4, 2), STF))
    stamp(a)
    stamp_flush(a, 3 + 4 * layer, 6)
    a.label("%s_done" % name)
    a("s_endpgm")
    kernels.append((name, 224, 512, LDS_ST + 1024, 256, 56))


def gen_k4(a, layer):
    name = "k4l%d_kernel" % layer
    kbegin(a, name)
    vm = VM(a)
    a("s_cmp_ge_u32 s2, 224")
    a("s_cbranch_scc1 %s_done" % name)
    stamp(a)
    a("s_load_dwordx2 s[4:5], s[0:1], 64")
    a("s_load_dwordx2 s[6:7], s[0:1], 80")
    tile_prologue(a)
    a("s_waitcnt lgkmcnt(0)")
    srd(a, 8, 6, 0, WS_TOTAL)
    srd(a, 16, 4, 0, SZ_X)
    RES = 12
    a("s_mul_i32 s27, s3, 7")
    a("s_mul_i32 s28, s23, 224")
    a("s_add_u32 s28, s28, s27")
    a("s_lshl_b32 s28, s28, 10")
    a("s_add_u32 s28, s28, 0x%x" % OFF_WD)
    a("s_mul_i32 s29, s22, 224")
    a("s_add_u32 s29, s29, s27")
    a("s_lshl_b32 s29, s29, 10")
    a("s_add_u32 s29, s29, 0x%x" % OFF_H)
    for c in range(4):
        a("s_add_u32 s%d, s28, %d" % (36 + c, c * 56 * 1024))
        a("s_add_u32 s%d, s29, %d" % (40 + c, c * 56 * 1024))
        a("s_add_u32 s%d, s28, %d" % (44 + c, c * 56 * 1024 + 4096))
        a("s_add_u32 s%d, s29, %d" % (48 + c, c * 56 * 1024 + 4096))
    ACC = 16
    BUF = 80
    NST = 5

    def issue(i):
        st = BUF + (i % NST) * 32
        for c in range(4):
            sW = (36 if i < 4 else 44) + c
            vm.issue("s%d" % i, "buffer_load_dwordx4 %s, v5, s[8:11], s%d offen offset:%d" % (vr(st + c * 4, 4), sW, (i % 4) * 1024))
        for c in range(4):
            sH = (40 if i < 4 else 48) + c
            vm.issue("s%d" % i, "buffer_load_dwordx4 %s, v5, s[8:11], s%d offen offset:%d" % (vr(st + 16 + c * 4, 4), sH, (i % 4) * 1024))

    for i in range(NST):
        issue(i)
    a("s_lshl_b32 s30, s26, 10")
    a("s_add_u32 s30, s30, 0x%x" % OFF_X1)
    vm.issue("res", "buffer_load_dwordx4 v[12:15], v5, s[8:11], s30 offen")
    for i in range(7):
        vm.wait("s%d" % i)
        stamp(a)
        st = BUF + (i % NST) * 32
        for rt in range(4):
            for ct in range(4):
                d = vr(ACC + (rt * 4 + ct) * 4, 4)
                a("%s %s, %s, %s, %s" % (MF, d, vr(st + ct * 4, 4), vr(st + 16 + rt * 4, 4), "0" if i == 0 else d))
        if i + NST < 7:
            issue(i + NST)
    stamp(a)
    reduce_store(a, vm, ACC, RES, name, 4 + 4 * layer, OFF_X2, OFF_ST2, layer == 1)
    kernels.append((name, 224, 512, 131072, 240, 56))


def emit_file(a, dst):
    hdr = open("interleave_layers__linear_kernel_hedgehog__glu_gated_glu__prompt.s.ref").read().split("\n")
    head = [l for l in hdr if l.startswith(";") and "@launch" not in l and "Override launch" not in l and "grid=ceil" not in l]
    out = head[:]
    for (name, grid, block, lds, vg, sg) in kernels:
        out.append("; @launch kernel=%s grid=(%d,1,1) block=(%d,1,1) lds=%d" % (name, grid, block, lds))
    out.append('.amdgcn_target "amdgcn-amd-amdhsa--gfx950"')
    out.append(".text")
    out.append(a.text())
    out.append('.section .rodata,"a"')
    seen = set()
    for (name, grid, block, lds, vg, sg) in kernels:
        if name in seen:
            continue
        seen.add(name)
        out.append(".p2align 6")
        out.append(".amdhsa_kernel %s" % name)
        out.append("  .amdhsa_next_free_vgpr %d" % vg)
        out.append("  .amdhsa_next_free_sgpr %d" % (100 if STAMP else sg))
        out.append("  .amdhsa_accum_offset %d" % ((vg + 3) // 4 * 4))
        out.append("  .amdhsa_group_segment_fixed_size 0")
        out.append("  .amdhsa_kernarg_size 88")
        out.append("  .amdhsa_user_sgpr_count 2")
        out.append("  .amdhsa_user_sgpr_kernarg_segment_ptr 1")
        out.append("  .amdhsa_system_sgpr_workgroup_id_x 1")
        out.append("  .amdhsa_float_denorm_mode_32 3")
        out.append(".end_amdhsa_kernel")
    open(dst, "w").write("\n".join(out) + "\n")
    print("wrote", dst, "ws total", WS_TOTAL)


def main():
    a = Asm()
    gen_prep(a)
    for layer in range(2):
        gen_k1(a, layer)
        gen_k2(a, layer)
        gen_k3(a, layer)
        gen_k4(a, layer)
    dst = sys.argv[1] if len(sys.argv) > 1 else "interleave_layers__linear_kernel_hedgehog__glu_gated_glu__prompt.s"
    emit_file(a, dst)


if __name__ == "__main__":
    main()
```

```python
import sys
import os
from asmlib import Asm, vr, sr

OFF_WQKV = 0
SZ_WQKV = 16 * 84 * 1024
OFF_CQKV = OFF_WQKV + SZ_WQKV
SZ_CQKV = 16 * 6 * 1024
OFF_WPHI = OFF_CQKV + SZ_CQKV
SZ_WPHI = 16 * 2 * 1024
OFF_WO = OFF_WPHI + SZ_WPHI
SZ_WO = 16 * 28 * 1024
OFF_WGU = OFF_WO + SZ_WO
SZ_WGU = 112 * 14 * 2 * 1024
OFF_CGU = OFF_WGU + SZ_WGU
SZ_CGU = 112 * 2 * 1024
OFF_WD = OFF_CGU + SZ_CGU
SZ_WD = 28 * 56 * 1024
OFF_KV = OFF_WD + SZ_WD
SZ_KV = 2 * 16 * 8192
OFF_PHIQ = OFF_KV + SZ_KV
SZ_PHIQ = 128 * 16 * 2 * 1024
SZ_X = 2048 * 448 * 2
OFF_X0 = OFF_PHIQ + SZ_PHIQ
OFF_X1 = OFF_X0 + SZ_X
OFF_X2 = OFF_X1 + SZ_X
SZ_ST = 128 * 14 * 128
OFF_ST0 = OFF_X2 + SZ_X
OFF_ST1 = OFF_ST0 + SZ_ST
OFF_ST2 = OFF_ST1 + SZ_ST
OFF_H = OFF_ST2 + SZ_ST
SZ_H = 128 * 56 * 1024
WS_TOTAL = OFF_H + SZ_H

OOB = 0x40000000
LOG2E = 0x3FB8AA3B
ONES_BF = 0x3F803F80
MF = "v_mfma_f32_16x16x32_bf16"

kernels = []
kdefs = {}
launches = []
STAMP = int(os.environ.get("STAMP", "0"))
STF = os.environ.get("STF", "")
OFF_STAMP = 32 << 20
_nst = [0]


def stamp(a):
    if not STAMP:
        return
    i = _nst[0]
    a("s_memtime s[%d:%d]" % (60 + 2 * i, 61 + 2 * i))
    _nst[0] += 1


def stamp_flush(a, kidx, wsp):
    if not STAMP:
        return
    n = _nst[0]
    _nst[0] = 0
    a("s_waitcnt vmcnt(0) lgkmcnt(0)")
    a("s_cmp_ge_u32 s2, 8")
    a("s_cbranch_scc1 st_skip_%d" % kidx)
    srd(a, 92, wsp, OFF_STAMP + kidx * 16384, 16384)
    a("s_lshl_b32 s96, s2, 3")
    a("s_add_u32 s96, s96, s3")
    a("s_lshl_b32 s96, s96, 7")
    a("v_mov_b32 v1, 0")
    for i in range(n):
        a("v_mov_b32 v2, s%d" % (60 + 2 * i))
        a("buffer_store_dword v2, v1, s[92:95], s96 offen offset:%d" % (4 * i))
    a("s_waitcnt vmcnt(0)")
    a.label("st_skip_%d" % kidx)


class VM:
    def __init__(self, a):
        self.a = a
        self.q = []

    def issue(self, tag, text):
        self.a(text)
        self.q.append(tag)

    def count_after(self, tag):
        idx = max(i for i, t in enumerate(self.q) if t == tag)
        return len(self.q) - 1 - idx

    def wait(self, tag, extra=""):
        n = min(self.count_after(tag), 63)
        self.a(("s_waitcnt vmcnt(%d) " % n + extra).strip())


class Rec:
    def __init__(self):
        self.items = []

    def __call__(self, text):
        self.items.append(("i", text))

    def issue(self, tag, text):
        self.items.append(("v", tag, text))

    def wait(self, tag, extra=""):
        self.items.append(("w", tag, extra))


def play(a, vm, it):
    if it[0] == "i":
        a(it[1])
    elif it[0] == "v":
        vm.issue(it[1], it[2])
    else:
        vm.wait(it[1], it[2])


def interleave(a, vm, main, side, per):
    acc = 0.0
    j = 0
    for it in main.items:
        play(a, vm, it)
        if it[0] == "i" and it[1].startswith("v_mfma"):
            acc += per
            while acc >= 1.0 and j < len(side.items):
                play(a, vm, side.items[j])
                j += 1
                acc -= 1.0
    while j < len(side.items):
        play(a, vm, side.items[j])
        j += 1


def kbegin(a, name):
    a.raw(".globl %s" % name)
    a.raw(".p2align 8")
    a.raw(".type %s,@function" % name)
    a.raw(name + ":")
    a.hist = []


def srd(a, d, p, off, size):
    if off:
        a("s_add_u32 s%d, s%d, 0x%x" % (d, p, off))
        a("s_addc_u32 s%d, s%d, 0" % (d + 1, p + 1))
        a("s_and_b32 s%d, s%d, 0xffff" % (d + 1, d + 1))
    else:
        a("s_mov_b32 s%d, s%d" % (d, p))
        a("s_and_b32 s%d, s%d, 0xffff" % (d + 1, p + 1))
    a("s_mov_b32 s%d, 0x%x" % (d + 2, size))
    a("s_mov_b32 s%d, 0x20000" % (d + 3))


def kmapD_slot(j):
    return j if j < 4 else 12 + j


def butterfly(a, regs, tmp, op):
    for swap in ("v_permlane16_swap_b32", "v_permlane32_swap_b32"):
        for r, t in zip(regs, tmp):
            a("v_mov_b32 v%d, v%d" % (t, r))
        for r, t in zip(regs, tmp):
            a("%s v%d, v%d" % (swap, r, t))
        for r, t in zip(regs, tmp):
            a("%s v%d, v%d, v%d" % (op, r, r, t))


def ln_finish(a, vsum, vsq, vmb, vrinv, t0, t1):
    a("v_mul_f32 v%d, 0x3b124925, v%d" % (vsum, vsum))
    a("v_mul_f32 v%d, 0x3b124925, v%d" % (vsq, vsq))
    a("v_fma_f32 v%d, -v%d, v%d, v%d" % (vsq, vsum, vsum, vsq))
    a("v_max_f32 v%d, 0, v%d" % (vsq, vsq))
    a("v_cvt_pk_bf16_f32 v%d, v%d, v%d" % (t0, vsum, vsq))
    a("v_lshlrev_b32 v%d, 16, v%d" % (vmb, t0))
    a("v_and_b32 v%d, 0xffff0000, v%d" % (t1, t0))
    a("v_add_f32 v%d, 0x3727c5ac, v%d" % (t1, t1))
    a("v_cvt_pk_bf16_f32 v%d, v%d, v%d" % (t0, t1, t1))
    a("v_lshlrev_b32 v%d, 16, v%d" % (t1, t0))
    a("v_sqrt_f32 v%d, v%d" % (t1, t1))
    a("v_cvt_pk_bf16_f32 v%d, v%d, v%d" % (t0, t1, t1))
    a("v_lshlrev_b32 v%d, 16, v%d" % (t1, t0))
    a("v_rcp_f32 v%d, v%d" % (vrinv, t1))


def stats_addr(a, vst, vst3, vl15, vg, vtmp):
    a("v_lshlrev_b32 v%d, 7, v%d" % (vst, vg))
    a("v_lshlrev_b32 v%d, 3, v%d" % (vtmp, vl15))
    a("v_add_u32 v%d, v%d, v%d" % (vst, vst, vtmp))
    a("v_mov_b32 v%d, 0x%x" % (vtmp, OOB))
    a("v_cmp_gt_u32 vcc, 2, v%d" % vg)
    a("v_cndmask_b32 v%d, v%d, v%d, vcc" % (vst3, vtmp, vst))


def stats_load(vm, tag, dst, vst, vst3, s_srd, s_off):
    for i in range(4):
        vm.issue(tag, "buffer_load_dwordx2 %s, v%d, %s, s%d offen offset:%d" % (vr(dst + 2 * i, 2), vst if i < 3 else vst3, sr(s_srd, 4), s_off, i * 512))


def stats_finish(a, src, vmb, vri, t0, t1):
    a("v_add_f32 v%d, v%d, v%d" % (src, src, src + 2))
    a("v_add_f32 v%d, v%d, v%d" % (src + 1, src + 1, src + 3))
    a("v_add_f32 v%d, v%d, v%d" % (src + 4, src + 4, src + 6))
    a("v_add_f32 v%d, v%d, v%d" % (src + 5, src + 5, src + 7))
    a("v_add_f32 v%d, v%d, v%d" % (src, src, src + 4))
    a("v_add_f32 v%d, v%d, v%d" % (src + 1, src + 1, src + 5))
    butterfly(a, [src, src + 1], [t0, t1], "v_add_f32")
    ln_finish(a, src, src + 1, vmb, vri, t0, t1)


def softmax_pair(a, P, T, outp, outm, sg3, vL):
    E = T[0:8]
    G = T[8:16]
    mx, mn, t0, t1 = T[16], T[17], T[18], T[19]
    a("v_max3_f32 v%d, v%d, v%d, v%d" % (t0, P[4], P[5], P[6]))
    a("v_min3_f32 v%d, v%d, v%d, v%d" % (t1, P[4], P[5], P[6]))
    a("v_max_f32 v%d, v%d, v%d" % (t0, t0, P[7]))
    a("v_min_f32 v%d, v%d, v%d" % (t1, t1, P[7]))
    a("v_cndmask_b32 v%d, v%d, v%d, %s" % (t0, t0, P[0], sg3))
    a("v_cndmask_b32 v%d, v%d, v%d, %s" % (t1, t1, P[0], sg3))
    a("v_max3_f32 v%d, v%d, v%d, v%d" % (mx, P[0], P[1], P[2]))
    a("v_min3_f32 v%d, v%d, v%d, v%d" % (mn, P[0], P[1], P[2]))
    a("v_max3_f32 v%d, v%d, v%d, v%d" % (mx, mx, P[3], t0))
    a("v_min3_f32 v%d, v%d, v%d, v%d" % (mn, mn, P[3], t1))
    for swap in ("v_permlane16_swap_b32", "v_permlane32_swap_b32"):
        a("v_mov_b32 v%d, v%d" % (t0, mx))
        a("v_mov_b32 v%d, v%d" % (t1, mn))
        a("%s v%d, v%d" % (swap, mx, t0))
        a("%s v%d, v%d" % (swap, mn, t1))
        a("v_max_f32 v%d, v%d, v%d" % (mx, mx, t0))
        a("v_min_f32 v%d, v%d, v%d" % (mn, mn, t1))
    a("v_mul_f32 v%d, v%d, v%d" % (mx, mx, vL))
    a("v_mul_f32 v%d, v%d, v%d" % (mn, mn, vL))
    for i in range(8):
        a("v_fma_f32 v%d, v%d, v%d, -v%d" % (E[i], P[i], vL, mx))
        a("v_fma_f32 v%d, -v%d, v%d, v%d" % (G[i], P[i], vL, mn))
    for i in range(8):
        a("v_exp_f32 v%d, v%d" % (E[i], E[i]))
        a("v_exp_f32 v%d, v%d" % (G[i], G[i]))
    for i in range(4, 8):
        a("v_cndmask_b32 v%d, v%d, 0, %s" % (E[i], E[i], sg3))
        a("v_cndmask_b32 v%d, v%d, 0, %s" % (G[i], G[i], sg3))
    sp, sm = mx, mn
    a("v_add_f32 v%d, v%d, v%d" % (sp, E[0], E[1]))
    a("v_add_f32 v%d, v%d, v%d" % (sm, G[0], G[1]))
    for i in range(2, 8):
        a("v_add_f32 v%d, v%d, v%d" % (sp, sp, E[i]))
        a("v_add_f32 v%d, v%d, v%d" % (sm, sm, G[i]))
    butterfly(a, [sp, sm], [t0, t1], "v_add_f32")
    a("v_rcp_f32 v%d, v%d" % (sp, sp))
    a("v_rcp_f32 v%d, v%d" % (sm, sm))
    for i in range(8):
        a("v_mul_f32 v%d, v%d, v%d" % (E[i], E[i], sp))
        a("v_mul_f32 v%d, v%d, v%d" % (G[i], G[i], sm))
    for i in range(4):
        a("v_cvt_pk_bf16_f32 v%d, v%d, v%d" % (outp + i, E[2 * i], E[2 * i + 1]))
        a("v_cvt_pk_bf16_f32 v%d, v%d, v%d" % (outm + i, G[2 * i], G[2 * i + 1]))


NPREP = 267


def gen_prep(a):
    name = "prep_kernel"
    kbegin(a, name)
    a("s_cmp_ge_u32 s2, %d" % NPREP)
    a("s_cbranch_scc1 prep_done")
    stamp(a)
    a("s_load_dwordx16 s[4:19], s[0:1], 0")
    a("s_load_dwordx2 s[20:21], s[0:1], 80")
    a("v_and_b32 v1, 63, v0")
    a("v_lshrrev_b32 v2, 6, v0")
    a("v_readfirstlane_b32 s3, v2")
    a("v_and_b32 v3, 15, v1")
    a("v_lshrrev_b32 v4, 4, v1")
    a("v_lshlrev_b32 v5, 4, v1")
    a("v_mov_b32 v6, 0x%x" % OOB)
    for i in range(4):
        a("v_mov_b32 v%d, 0x%x" % (8 + i, ONES_BF))
    a("v_cmp_eq_u32 s[40:41], 3, v4")
    a("s_and_b32 s46, s3, 1")
    a("s_lshr_b32 s47, s3, 1")
    a("v_lshrrev_b32 v7, 2, v3")
    a("v_lshl_add_u32 v7, v4, 2, v7")
    a("v_lshlrev_b32 v7, 6, v7")
    a("v_and_b32 v12, 3, v3")
    a("v_lshl_add_u32 v7, v12, 3, v7")
    a("s_lshl_b32 s48, s46, 5")
    a("v_add_u32 v7, s48, v7")
    a("v_lshrrev_b32 v13, 2, v1")
    a("v_and_b32 v14, 3, v1")
    a("v_lshlrev_b32 v14, 4, v14")
    a("s_getpc_b64 s[56:57]")
    a.raw("prep_pc:")
    a("s_lshl_b32 s58, s3, 10")
    a("v_add_u32 v15, s58, v5")
    a("v_mov_b32 v16, code_end - prep_pc - 16")
    for i in range(2):
        a("v_add_u32 v17, %d, v15" % (i * 4096))
        a("v_min_u32 v17, v17, v16")
        a("global_load_dwordx4 v[160:163], v17, s[56:57]")
    a("s_cmp_ge_u32 s2, 16")
    a("s_cbranch_scc1 prep_nopf")
    for i in range(2, 9):
        a("v_add_u32 v17, %d, v15" % (i * 4096))
        a("v_min_u32 v17, v17, v16")
        a("global_load_dwordx4 v[160:163], v17, s[56:57]")
    a.raw("prep_nopf:")
    a("s_waitcnt lgkmcnt(0)")
    srd(a, 24, 20, 0, WS_TOTAL)
    a("s_cmp_lt_u32 s2, 112")
    a("s_cbranch_scc1 prep_wgu")
    a("s_cmp_lt_u32 s2, 160")
    a("s_cbranch_scc1 prep_wqkv")
    a("s_cmp_lt_u32 s2, 216")
    a("s_cbranch_scc1 prep_wd")
    a("s_cmp_lt_u32 s2, 230")
    a("s_cbranch_scc1 prep_wo")
    a("s_cmp_lt_u32 s2, 262")
    a("s_cbranch_scc1 prep_x")
    a("s_cmp_lt_u32 s2, 263")
    a("s_cbranch_scc1 prep_wphi")
    a("s_branch prep_zero")

    FR = 32
    CSL = 29696

    def stage(RS):
        a("v_mul_u32_u24 v16, %d, v13" % RS)
        a("v_add_u32 v16, v16, v14")
        a("s_mul_i32 s36, s3, %d" % (7 * 16 * RS))
        a("s_add_u32 s36, s36, s35")
        a("s_mul_i32 s37, s3, %d" % (7 * 1024))
        for i in range(7):
            a("s_mov_b32 m0, s37")
            a("buffer_load_dwordx4 v16, s[28:31], s36 offen lds")
            if i < 6:
                a("s_add_u32 s36, s36, %d" % (16 * RS))
                a("s_add_u32 s37, s37, 1024")
        a("s_waitcnt vmcnt(0)")
        if STAMP:
            a("s_memtime s[62:63]")
        a("s_barrier")

    def trfrags(n, step, half_off):
        a("s_mul_i32 s36, s47, %d" % half_off)
        a("v_add_u32 v17, s36, v7")
        for j in range(n):
            a("ds_read_b64_tr_b16 %s, v17 offset:%d" % (vr(FR + 4 * j, 2), j * step))
            a("ds_read_b64_tr_b16 %s, v17 offset:%d" % (vr(FR + 4 * j + 2, 2), j * step + 1024))
        a("s_waitcnt lgkmcnt(0)")
        if STAMP:
            a("s_memtime s[64:65]")

    def store_frags(n, s_dst, stride):
        for j in range(n):
            a("s_add_u32 s37, s%d, 0x%x" % (s_dst, j * stride))
            a("buffer_store_dwordx4 %s, v5, s[24:27], s37 offen" % vr(FR + 4 * j, 4))
        if STAMP:
            a("s_memtime s[66:67]")

    def colsum(s_cdst, tag):
        for j in range(7):
            a("%s v[16:19], %s, v[8:11], %s" % (MF, vr(FR + 4 * j, 4), "0" if j == 0 else "v[16:19]"))
        a("s_lshl_b32 s36, s46, 10")
        a("s_add_u32 s36, s36, %d" % CSL)
        a("v_add_u32 v20, s36, v5")
        a("s_cmp_eq_u32 s47, 0")
        a("s_cbranch_scc1 prep_cs0_%s" % tag)
        a("ds_write_b128 v20, v[16:19]")
        a("s_waitcnt lgkmcnt(0)")
        a("s_barrier")
        a("s_branch prep_done")
        a.label("prep_cs0_%s" % tag)
        a("s_barrier")
        a("ds_read_b128 v[20:23], v20")
        a("s_waitcnt lgkmcnt(0)")
        for i in range(4):
            a("v_add_f32 v%d, v%d, v%d" % (16 + i, 16 + i, 20 + i))
        a("buffer_store_dwordx4 v[16:19], v5, s[24:27], s%d offen" % s_cdst)
        a("s_branch prep_done")

    a.label("prep_wgu")
    a("s_lshr_b32 s32, s2, 4")
    a("s_lshl_b32 s32, s32, 3")
    a("s_and_b32 s33, s2, 7")
    a("s_add_u32 s32, s32, s33")
    a("s_and_b32 s34, s32, 1")
    a("s_lshr_b32 s32, s32, 1")
    a("s_lshl_b32 s32, s32, 1")
    a("s_bfe_u32 s33, s2, 0x10003")
    a("s_add_u32 s32, s32, s33")
    a("s_cmp_eq_u32 s34, 0")
    a("s_cselect_b32 s44, s14, s16")
    a("s_cselect_b32 s45, s15, s17")
    srd(a, 28, 44, 0, 448 * 1792 * 2)
    a("s_lshl_b32 s35, s32, 6")
    stage(3584)
    trfrags(7, 2048, 7 * 2048)
    a("s_lshl_b32 s33, s32, 1")
    a("s_add_u32 s33, s33, s46")
    a("s_mul_i32 s39, s33, 14")
    a("s_mul_i32 s38, s47, 7")
    a("s_add_u32 s39, s39, s38")
    a("s_lshl_b32 s39, s39, 1")
    a("s_add_u32 s39, s39, s34")
    a("s_lshl_b32 s39, s39, 10")
    a("s_add_u32 s39, s39, 0x%x" % OFF_WGU)
    store_frags(7, 39, 2048)
    a("s_lshl_b32 s42, s33, 1")
    a("s_add_u32 s42, s42, s34")
    a("s_lshl_b32 s42, s42, 10")
    a("s_add_u32 s42, s42, 0x%x" % OFF_CGU)
    colsum(42, "gu")

    a.label("prep_wqkv")
    srd(a, 28, 6, 0, 448 * 1344 * 2)
    a("s_sub_u32 s32, s2, 112")
    a("s_lshr_b32 s33, s32, 4")
    a("s_and_b32 s34, s32, 15")
    a("s_mul_i32 s35, s33, 896")
    a("s_mul_i32 s38, s34, 56")
    a("s_add_u32 s35, s35, s38")
    stage(2688)
    trfrags(7, 2048, 7 * 2048)
    a("s_mul_i32 s38, s46, 4")
    a("s_sub_u32 s38, 16, s38")
    a("v_cmp_gt_u32 vcc, s38, v3")
    for i in range(28):
        a("v_cndmask_b32 v%d, 0, v%d, vcc" % (FR + i, FR + i))
    a("s_lshl_b32 s33, s33, 1")
    a("s_add_u32 s33, s33, s46")
    a("s_mul_i32 s39, s34, 14")
    a("s_mul_i32 s38, s47, 7")
    a("s_add_u32 s39, s39, s38")
    a("s_mul_i32 s39, s39, 6")
    a("s_add_u32 s39, s39, s33")
    a("s_lshl_b32 s39, s39, 10")
    a("s_add_u32 s39, s39, 0x%x" % OFF_WQKV)
    store_frags(7, 39, 6 * 1024)
    a("s_mul_i32 s42, s34, 6")
    a("s_add_u32 s42, s42, s33")
    a("s_lshl_b32 s42, s42, 10")
    a("s_add_u32 s42, s42, 0x%x" % OFF_CQKV)
    colsum(42, "qkv")

    a.label("prep_wd")
    srd(a, 28, 18, 0, 1792 * 448 * 2)
    a("s_sub_u32 s32, s2, 160")
    a("s_and_b32 s34, s32, 3")
    a("s_lshr_b32 s32, s32, 2")
    a("s_mul_i32 s35, s34, %d" % (448 * 896))
    a("s_lshl_b32 s38, s32, 6")
    a("s_add_u32 s35, s35, s38")
    stage(896)
    trfrags(7, 2048, 7 * 2048)
    a("s_lshl_b32 s33, s32, 1")
    a("s_add_u32 s33, s33, s46")
    a("s_mul_i32 s39, s33, 56")
    a("s_mul_i32 s38, s34, 14")
    a("s_add_u32 s39, s39, s38")
    a("s_mul_i32 s38, s47, 7")
    a("s_add_u32 s39, s39, s38")
    a("s_lshl_b32 s39, s39, 10")
    a("s_add_u32 s39, s39, 0x%x" % OFF_WD)
    store_frags(7, 39, 1024)
    a("s_branch prep_done")

    a.label("prep_wo")
    srd(a, 28, 10, 0, 448 * 448 * 2)
    a("s_sub_u32 s32, s2, 216")
    a("s_lshl_b32 s35, s32, 6")
    stage(896)
    trfrags(8, 28 * 64, 8 * 28 * 64)
    for j in range(8):
        a("v_cndmask_b32 v%d, v%d, 0, s[40:41]" % (FR + 4 * j + 2, FR + 4 * j + 2))
        a("v_cndmask_b32 v%d, v%d, 0, s[40:41]" % (FR + 4 * j + 3, FR + 4 * j + 3))
    a("s_lshl_b32 s33, s32, 1")
    a("s_add_u32 s33, s33, s46")
    a("s_mul_i32 s39, s47, %d" % (8 * 28))
    a("s_add_u32 s39, s39, s33")
    a("s_lshl_b32 s39, s39, 10")
    a("s_add_u32 s39, s39, 0x%x" % OFF_WO)
    store_frags(8, 39, 28 * 1024)
    a("s_branch prep_done")

    RAW = 100
    a.label("prep_wphi")
    srd(a, 28, 8, 0, 16 * 28 * 28 * 2)
    a("s_mul_i32 s35, s3, %d" % (4 * 1568))
    a("v_lshlrev_b32 v16, 1, v3")
    a("v_mul_u32_u24 v17, %d, v4" % (4 * 56))
    a("v_add_u32 v16, v16, v17")
    a("v_add_u32 v16, s35, v16")
    a("v_cndmask_b32 v18, v16, v6, s[40:41]")
    a("v_add_u32 v19, 32, v16")
    a("v_cmp_gt_u32 vcc, 12, v3")
    a("v_cndmask_b32 v19, v6, v19, vcc")
    a("v_cndmask_b32 v20, v19, v6, s[40:41]")
    for hh in range(4):
        for ft in range(2):
            vo = [16] * 4 + [18] * 4 if ft == 0 else [19] * 4 + [20] * 4
            for j in range(8):
                a("s_mov_b32 s36, 0x%x" % (hh * 1568 + kmapD_slot(j) * 56))
                a("buffer_load_ushort v%d, v%d, s[28:31], s36 offen" % (RAW + (hh * 2 + ft) * 8 + j, vo[j]))
    a("s_lshl_b32 s39, s3, 13")
    a("s_add_u32 s39, s39, 0x%x" % OFF_WPHI)
    a("s_waitcnt vmcnt(0)")
    for f in range(8):
        for i in range(4):
            a("v_lshl_or_b32 v%d, v%d, 16, v%d" % (FR + f * 4 + i, RAW + f * 8 + 2 * i + 1, RAW + f * 8 + 2 * i))
    store_frags(8, 39, 1024)
    a("s_branch prep_done")

    a.label("prep_zero")
    a("s_sub_u32 s32, s2, 263")
    a("s_lshl_b32 s39, s32, 16")
    a("s_add_u32 s39, s39, 0x%x" % OFF_KV)
    a("v_lshlrev_b32 v16, 4, v0")
    for i in range(4):
        a("v_mov_b32 v%d, 0" % (20 + i))
    for i in range(16):
        a("s_add_u32 s37, s39, 0x%x" % (i * 4096))
        a("buffer_store_dwordx4 v[20:23], v16, s[24:27], s37 offen")
    a("s_branch prep_done")

    a.label("prep_x")
    srd(a, 28, 4, 0, SZ_X)
    a("s_sub_u32 s32, s2, 230")
    a("s_lshl_b32 s32, s32, 2")
    a("s_add_u32 s32, s32, s3")
    a("s_lshl_b32 s33, s32, 4")
    a("v_add_u32 v16, s33, v3")
    a("v_mul_u32_u24 v16, 896, v16")
    a("v_lshlrev_b32 v17, 3, v4")
    a("v_add_u32 v16, v16, v17")
    for ks in range(14):
        a("buffer_load_dwordx2 %s, v16, s[28:31], 0 offen offset:%d" % (vr(FR + 4 * ks, 2), ks * 64))
        a("buffer_load_dwordx2 %s, v16, s[28:31], 0 offen offset:%d" % (vr(FR + 4 * ks + 2, 2), ks * 64 + 32))
    a("s_mul_i32 s39, s32, %d" % (14 * 1024))
    a("s_add_u32 s39, s39, 0x%x" % OFF_X0)
    for i in range(4):
        a("v_mov_b32 v%d, 0" % (12 + i))
    a("s_waitcnt vmcnt(0)")
    store_frags(14, 39, 1024)
    for ks in range(14):
        for r in range(4):
            x = FR + 4 * ks + r
            a("v_dot2c_f32_bf16 v%d, v%d, v8" % (12 + 2 * (r & 1), x))
            a("v_dot2c_f32_bf16 v%d, v%d, v%d" % (13 + 2 * (r & 1), x, x))
    a("v_add_f32 v12, v12, v14")
    a("v_add_f32 v13, v13, v15")
    butterfly(a, [12, 13], [14, 15], "v_add_f32")
    a("v_mov_b32 v14, 0")
    a("v_mov_b32 v15, 0")
    a("v_cmp_eq_u32 vcc, 0, v4")
    a("v_cndmask_b32 v12, 0, v12, vcc")
    a("v_cndmask_b32 v13, 0, v13, vcc")
    stats_addr(a, 18, 19, 3, 4, 17)
    a("s_mul_i32 s39, s32, %d" % (14 * 128))
    a("s_add_u32 s39, s39, 0x%x" % OFF_ST0)
    a("buffer_store_dwordx2 v[12:13], v18, s[24:27], s39 offen")
    a("buffer_store_dwordx2 v[14:15], v18, s[24:27], s39 offen offset:512")
    a("buffer_store_dwordx2 v[14:15], v18, s[24:27], s39 offen offset:1024")
    a("buffer_store_dwordx2 v[14:15], v19, s[24:27], s39 offen offset:1536")
    a.label("prep_done")
    if STAMP:
        _nst[0] = 4
        stamp(a)
        a("s_cmp_ge_u32 s2, %d" % NPREP)
        a("s_cbranch_scc1 prep_done2")
        a("s_mov_b32 s6, s20")
        a("s_mov_b32 s7, s21")
        stamp_flush(a, 0, 6)
        a.label("prep_done2")
    a("s_endpgm")
    kdefs[name] = (168, 64, 0)


def stubs(a, base, params, body):
    for layer, p in enumerate(params):
        kbegin(a, "%sl%d_kernel" % (base, layer))
        for r, v in p.items():
            a("s_mov_b32 s%d, 0x%x" % (r, v))
        a("s_branch %s" % body)
    a.raw(".p2align 6")
    a.label(body)


def gen_k1(a):
    name = "k1"
    stubs(a, "k1", [{52: OFF_X0, 53: OFF_ST0, 54: OFF_KV}, {52: OFF_X2, 53: OFF_ST2, 54: OFF_KV + 131072}], "k1_body")
    vm = VM(a)
    LDS_RED = 86016
    a("s_cmp_ge_u32 s2, 256")
    a("s_cbranch_scc1 %s_done" % name)
    stamp(a)
    a("s_load_dwordx2 s[6:7], s[0:1], 80")
    a("v_and_b32 v1, 63, v0")
    a("v_lshrrev_b32 v2, 6, v0")
    a("v_readfirstlane_b32 s3, v2")
    a("v_and_b32 v3, 15, v1")
    a("v_lshrrev_b32 v4, 4, v1")
    a("v_lshlrev_b32 v5, 4, v1")
    a("v_cmp_eq_u32 s[40:41], 3, v4")
    stats_addr(a, 6, 7, 3, 4, 8)
    a("s_and_b32 s20, s2, 7")
    a("s_lshr_b32 s21, s2, 3")
    a("s_and_b32 s22, s20, 3")
    a("s_lshl_b32 s22, s22, 2")
    a("s_and_b32 s23, s21, 3")
    a("s_add_u32 s22, s22, s23")
    a("s_lshr_b32 s23, s20, 2")
    a("s_lshl_b32 s23, s23, 3")
    a("s_lshr_b32 s24, s21, 2")
    a("s_add_u32 s23, s23, s24")
    a("s_lshl_b32 s24, s22, 3")
    a("s_add_u32 s24, s24, s3")
    a("s_mul_i32 s25, s24, %d" % (14 * 1024))
    a("s_add_u32 s25, s25, s52")
    for c in range(4):
        a("s_add_u32 s%d, s25, %d" % (44 + c, c * 4096))
    a("s_mul_i32 s26, s23, 86016")
    a("s_add_u32 s26, s26, 0x%x" % OFF_WQKV)
    a("s_lshl_b32 s27, s3, 10")
    a("s_add_u32 s26, s26, s27")
    a("s_mul_i32 s30, s24, %d" % (14 * 128))
    a("s_add_u32 s30, s30, s53")
    a("s_mul_i32 s35, s23, 6144")
    a("s_add_u32 s35, s35, 0x%x" % OFF_CQKV)
    a("s_add_u32 s36, s35, 4096")
    a("s_lshl_b32 s32, s23, 11")
    a("s_add_u32 s32, s32, 0x%x" % OFF_WPHI)
    a("s_waitcnt lgkmcnt(0)")
    srd(a, 8, 6, 0, WS_TOTAL)
    X = 200

    def xload(ks):
        vm.issue("x%d" % ks, "buffer_load_dwordx4 %s, v5, s[8:11], s%d offen offset:%d" % (vr(X + ks * 4, 4), 44 + ks // 4, (ks % 4) * 1024))

    def dma(i, tag):
        a("s_mov_b32 m0, s27")
        vm.issue(tag, "buffer_load_dwordx4 v5, s[8:11], s26 offen lds")
        if i < 10:
            a("s_add_u32 s26, s26, 8192")
            a("s_add_u32 s27, s27, 8192")

    for i in range(7):
        xload(i)
        if i < 6:
            dma(i, "dmaA")
    ST = 156
    CS = 112
    WP = 136
    late = []
    for i in range(6, 11):
        late.append(lambda i=i: dma(i, "dmaB"))
        late.append(lambda i=i: xload(i + 1))
    late.append(lambda: xload(12))
    late.append(lambda: xload(13))
    late2 = []
    late2.append(lambda: stats_load(vm, "st", ST, 6, 7, 8, 30))
    for ct in range(6):
        late2.append(lambda ct=ct: vm.issue("cs", "buffer_load_dwordx4 %s, v5, s[8:11], s%d offen offset:%d" % (vr(CS + 4 * ct, 4), 35 if ct < 4 else 36, (ct % 4) * 1024)))
    for ft in range(2):
        late2.append(lambda ft=ft: vm.issue("cs", "buffer_load_dwordx4 %s, v5, s[8:11], s32 offen offset:%d" % (vr(WP + 4 * ft, 4), ft * 1024)))
    ID = 144
    VL = 150
    MB = 152
    RI = 154
    a("v_mov_b32 v%d, 0x%x" % (VL, LOG2E))
    for i in (0, 1, 4, 5):
        a("v_mov_b32 v%d, 0" % (ID + i))
    a("v_lshrrev_b32 v8, 2, v3")
    a("v_cmp_eq_u32 vcc, v8, v4")
    a("v_and_b32 v9, 3, v3")
    a("v_and_b32 v10, 1, v9")
    a("v_lshlrev_b32 v10, 4, v10")
    a("v_mov_b32 v11, 0x3f80")
    a("v_lshlrev_b32 v11, v10, v11")
    a("v_cndmask_b32 v11, 0, v11, vcc")
    a("v_cmp_gt_u32 vcc, 2, v9")
    a("v_cndmask_b32 v%d, 0, v11, vcc" % (ID + 2))
    a("v_cndmask_b32 v%d, v11, 0, vcc" % (ID + 3))
    a("v_add_u32 v8, 43008, v5")
    WB = 16
    ACC = 64

    def wread(ks):
        dst = WB + (ks & 1) * 24
        for ct in range(6):
            off = (ks * 6 + ct) * 1024
            if ks < 7:
                a("ds_read_b128 %s, v5 offset:%d" % (vr(dst + ct * 4, 4), off))
            else:
                a("ds_read_b128 %s, v8 offset:%d" % (vr(dst + ct * 4, 4), off - 43008))

    def mm(ks, q, nq):
        cur = WB + (ks & 1) * 24
        n = 0
        for ct in (2, 3, 4, 5, 0, 1):
            d = vr(ACC + ct * 4, 4)
            a("%s %s, %s, %s, %s" % (MF, d, vr(cur + ct * 4, 4), vr(X + ks * 4, 4), "0" if ks == 0 else d))
            if n < nq and q and ct % 2 == 1:
                q.pop(0)()
                n += 1

    vm.wait("x6")
    stamp(a)
    a("s_barrier")
    wread(0)
    for ks in range(14):
        if ks == 6:
            a("s_waitcnt lgkmcnt(0)")
            mm(ks, late, 3)
            assert not late
            vm.wait("x13")
            stamp(a)
            a("s_barrier")
            wread(7)
            continue
        if ks < 13:
            wread(ks + 1)
            a("s_waitcnt lgkmcnt(6)")
        else:
            a("s_waitcnt lgkmcnt(0)")
        if ks < 6:
            mm(ks, late, 2)
        else:
            mm(ks, late2, 2)
    assert not late2
    stamp(a)

    def ln_apply(ct, dst2):
        b = ACC + ct * 4
        for r in range(4):
            a("v_fma_f32 v%d, -v%d, v%d, v%d" % (b + r, MB, CS + ct * 4 + r, b + r))
        for r in range(4):
            a("v_mul_f32 v%d, v%d, v%d" % (b + r, b + r, RI))
        a("v_cvt_pk_bf16_f32 v%d, v%d, v%d" % (dst2, b, b + 1))
        a("v_cvt_pk_bf16_f32 v%d, v%d, v%d" % (dst2 + 1, b + 2, b + 3))

    vm.wait("cs")
    stats_finish(a, ST, MB, RI, 9, 10)
    KF, VF, QF = 16, 20, 24
    a("v_mov_b32 v9, 0x3f80")
    ln_apply(2, KF)
    ln_apply(3, KF + 2)
    PK = 164
    PQ = 172
    for ft in range(2):
        a("%s %s, %s, %s, 0" % (MF, vr(PK + ft * 4, 4), vr(WP + 4 * ft, 4), vr(KF, 4)))
    ln_apply(4, VF)
    ln_apply(5, VF + 2)
    a("v_cndmask_b32 v%d, v%d, v9, s[40:41]" % (VF + 2, VF + 2))
    ln_apply(0, QF)
    ln_apply(1, QF + 2)
    for ft in range(2):
        a("%s %s, %s, %s, 0" % (MF, vr(PQ + ft * 4, 4), vr(WP + 4 * ft, 4), vr(QF, 4)))
    PH = 28
    TT = list(range(180, 200))
    PKT = 36
    VT = 52
    for i in range(6):
        a("v_mov_b32 v%d, 0" % (PKT + 4 * i + 2))
        a("v_mov_b32 v%d, 0" % (PKT + 4 * i + 3))
    softmax_pair(a, [PK + i for i in range(8)], TT, PH, PH + 4, "s[40:41]", VL)
    TD = 64
    srcs = []
    for b in range(2):
        for t in range(2):
            srcs.append((PH + 4 * b, t, PKT + (2 * b + t) * 4))
    for t in range(2):
        srcs.append((VF, t, VT + t * 4))
    for i, (src, t, dst) in enumerate(srcs):
        idr = vr(ID + 2, 4) if t == 0 else vr(ID, 4)
        a("%s %s, %s, %s, 0" % (MF, vr(TD + 4 * i, 4), vr(src, 4), idr))
    for i, (src, t, dst) in enumerate(srcs):
        a("v_cvt_pk_bf16_f32 v%d, v%d, v%d" % (dst, TD + 4 * i, TD + 4 * i + 1))
        a("v_cvt_pk_bf16_f32 v%d, v%d, v%d" % (dst + 1, TD + 4 * i + 2, TD + 4 * i + 3))
    KVR = 64
    for ft in range(4):
        for dt in range(2):
            a("%s %s, %s, %s, 0" % (MF, vr(KVR + (ft * 2 + dt) * 4, 4), vr(PKT + 4 * ft, 4), vr(VT + 4 * dt, 4)))
    stamp(a)
    a("s_lshl_b32 s33, s3, 13")
    a("s_add_u32 s33, s33, %d" % LDS_RED)
    a("v_add_u32 v9, s33, v5")
    for t in range(8):
        a("ds_write_b128 v9, %s offset:%d" % (vr(KVR + 4 * t, 4), t * 1024))
    a("s_waitcnt lgkmcnt(0)")
    a("s_barrier")
    RD = 64
    a("s_lshl_b32 s33, s3, 10")
    a("s_add_u32 s33, s33, %d" % LDS_RED)
    a("v_lshlrev_b32 v9, 2, v1")
    a("v_add_u32 v10, s33, v9")
    for w in range(8):
        for i in range(4):
            a("ds_read_b32 v%d, v10 offset:%d" % (RD + w * 4 + i, w * 8192 + i * 256))
    a("s_lshl_b32 s33, s23, 13")
    a("s_add_u32 s33, s33, s54")
    a("s_lshl_b32 s34, s3, 10")
    a("s_add_u32 s33, s33, s34")
    PHQ = 16
    softmax_pair(a, [PQ + i for i in range(8)], TT, PHQ, PHQ + 4, "s[40:41]", VL)
    a("s_waitcnt lgkmcnt(0)")
    for step in (16, 8, 4):
        for d in range(RD, RD + step):
            a("v_add_f32 v%d, v%d, v%d" % (d, d, d + step))
    for r in range(4):
        a("buffer_atomic_add_f32 v%d, v9, s[8:11], s33 offen offset:%d" % (RD + r, r * 256))
    a("s_lshl_b32 s33, s24, 4")
    a("s_add_u32 s33, s33, s23")
    a("s_lshl_b32 s33, s33, 11")
    a("s_add_u32 s33, s33, 0x%x" % OFF_PHIQ)
    for b in range(2):
        a("buffer_store_dwordx4 %s, v5, s[8:11], s33 offen offset:%d%s" % (vr(PHQ + 4 * b, 4), b * 1024, STF))
    stamp(a)
    stamp_flush(a, 1, 6)
    a.label("%s_done" % name)
    a("s_endpgm")
    for layer in range(2):
        kdefs["k1l%d_kernel" % layer] = (256, 56, 0)


def tile_prologue(a):
    a("v_and_b32 v1, 63, v0")
    a("v_lshrrev_b32 v2, 6, v0")
    a("v_readfirstlane_b32 s3, v2")
    a("v_and_b32 v3, 15, v1")
    a("v_lshrrev_b32 v4, 4, v1")
    a("v_lshlrev_b32 v5, 4, v1")
    a("s_and_b32 s20, s2, 7")
    a("s_lshr_b32 s21, s2, 3")
    a("s_lshl_b32 s22, s20, 2")
    a("s_and_b32 s23, s21, 3")
    a("s_add_u32 s22, s22, s23")
    a("s_lshr_b32 s23, s21, 2")
    a("s_lshr_b32 s24, s3, 1")
    a("s_lshl_b32 s25, s22, 2")
    a("s_add_u32 s24, s24, s25")
    a("s_and_b32 s25, s3, 1")
    a("s_lshl_b32 s26, s23, 1")
    a("s_add_u32 s25, s25, s26")
    a("s_mul_i32 s26, s24, 14")
    a("s_add_u32 s26, s26, s25")


def reduce_store(a, vm, ACC, RES, name, kidx, off_out, off_st, final):
    a("s_lshl_b32 s33, s3, 14")
    a("v_add_u32 v9, s33, v5")
    for t in range(16):
        a("ds_write_b128 v9, %s offset:%d" % (vr(ACC + 4 * t, 4), t * 1024))
    a("s_lshl_b32 s33, s3, 11")
    a("v_add_u32 v9, s33, v5")
    a("v_add_u32 v10, 0x10000, v9")
    if final:
        a("s_lshl_b32 s34, s24, 4")
        a("v_add_u32 v7, s34, v3")
        a("v_mul_u32_u24 v7, 896, v7")
        a("s_lshl_b32 s34, s25, 6")
        a("v_lshlrev_b32 v11, 3, v4")
        a("v_add3_u32 v7, v7, v11, s34")
    a("s_lshl_b32 s34, s26, 10")
    a("s_add_u32 s34, s34, 0x%x" % off_out)
    a("s_lshl_b32 s35, s26, 7")
    a("s_add_u32 s35, s35, 0x%x" % off_st)
    a("v_lshlrev_b32 v8, 3, v3")
    a("v_mov_b32 v11, 0x%x" % ONES_BF)
    a("s_waitcnt lgkmcnt(0)")
    a("s_barrier")
    stamp(a)
    for w in range(8):
        for t in range(2):
            base = 9 if w < 4 else 10
            a("ds_read_b128 %s, v%d offset:%d" % (vr(ACC + (w * 2 + t) * 4, 4), base, (w & 3) * 16384 + t * 1024))
    a("s_waitcnt lgkmcnt(8)")
    for base in range(0, 16, 8):
        for i in range(8):
            d = ACC + base + i
            a("v_add_f32 v%d, v%d, v%d" % (d, d, d + 16))
    a("s_waitcnt lgkmcnt(0)")
    for base in range(32, 48, 8):
        for i in range(8):
            d = ACC + base + i
            a("v_add_f32 v%d, v%d, v%d" % (d, d, d + 16))
    for i in range(8):
        a("v_add_f32 v%d, v%d, v%d" % (ACC + i, ACC + i, ACC + 8 + i))
        a("v_add_f32 v%d, v%d, v%d" % (ACC + 32 + i, ACC + 32 + i, ACC + 40 + i))
    for i in range(8):
        a("v_add_f32 v%d, v%d, v%d" % (ACC + i, ACC + i, ACC + 32 + i))
    vm.wait("res")
    o = ACC + 8
    e = ACC + 16
    for i in range(4):
        a("v_cvt_pk_bf16_f32 v%d, v%d, v%d" % (o + i, ACC + 2 * i, ACC + 2 * i + 1))
    for i in range(4):
        a("v_lshlrev_b32 v%d, 16, v%d" % (ACC + 2 * i, o + i))
        a("v_and_b32 v%d, 0xffff0000, v%d" % (ACC + 2 * i + 1, o + i))
        a("v_lshlrev_b32 v%d, 16, v%d" % (e + 2 * i, RES + i))
        a("v_and_b32 v%d, 0xffff0000, v%d" % (e + 2 * i + 1, RES + i))
    for i in range(8):
        a("v_add_f32 v%d, v%d, v%d" % (ACC + i, ACC + i, e + i))
    for i in range(4):
        a("v_cvt_pk_bf16_f32 v%d, v%d, v%d" % (o + i, ACC + 2 * i, ACC + 2 * i + 1))
    if final:
        a("s_cmp_eq_u32 s55, 0")
        a("s_cbranch_scc1 %s_notfinal" % name)
        a("buffer_store_dwordx2 %s, v7, s[16:19], 0 offen" % vr(o, 2))
        a("buffer_store_dwordx2 %s, v7, s[16:19], 0 offen offset:32" % vr(o + 2, 2))
        a("s_branch %s_fin" % name)
        a.label("%s_notfinal" % name)
    a("buffer_store_dwordx4 %s, v5, s[8:11], s34 offen%s" % (vr(o, 4), STF))
    s = ACC + 24
    a("v_mov_b32 v%d, 0" % s)
    a("v_mov_b32 v%d, 0" % (s + 1))
    for i in range(4):
        a("v_dot2c_f32_bf16 v%d, v%d, v11" % (s, o + i))
        a("v_dot2c_f32_bf16 v%d, v%d, v%d" % (s + 1, o + i, o + i))
    butterfly(a, [s, s + 1], [s + 2, s + 3], "v_add_f32")
    a("buffer_store_dwordx2 %s, v8, s[8:11], s35 offen" % vr(s, 2))
    if final:
        a.label("%s_fin" % name)
    stamp(a)
    stamp_flush(a, kidx, 6)
    a.label("%s_done" % name)
    a("s_endpgm")


def gen_k2(a):
    name = "k2"
    stubs(a, "k2", [{52: OFF_X0, 54: OFF_KV}, {52: OFF_X2, 54: OFF_KV + 131072}], "k2_body")
    vm = VM(a)
    a("s_cmp_ge_u32 s2, 224")
    a("s_cbranch_scc1 %s_done" % name)
    stamp(a)
    a("s_load_dwordx2 s[6:7], s[0:1], 80")
    tile_prologue(a)
    a("v_lshlrev_b32 v6, 2, v1")
    a("v_cmp_eq_u32 s[40:41], 3, v4")
    a("s_waitcnt lgkmcnt(0)")
    srd(a, 8, 6, 0, WS_TOTAL)
    ACC = 16
    RES = 12

    def HB(hh):
        return 80 + hh * 80

    for hh in range(2):
        hb = HB(hh)
        a("s_lshl_b32 s27, s3, 1")
        a("s_add_u32 s27, s27, %d" % hh)
        a("s_lshl_b32 s28, s27, 13")
        a("s_add_u32 s28, s28, s54")
        a("s_add_u32 s29, s28, 4096")
        for b in range(2):
            for dt in range(2):
                for hf in range(2):
                    ft = 2 * b + hf
                    vm.issue("kv%d" % hh, "buffer_load_dwordx4 %s, v5, s[8:11], s%d offen offset:%d" % (vr(hb + (b * 2 + dt) * 8 + hf * 4, 4), 28 + b, (hf * 2 + dt) * 1024))
        a("s_lshl_b32 s30, s22, 6")
        a("s_add_u32 s30, s30, s27")
        a("s_lshl_b32 s30, s30, 11")
        a("s_add_u32 s30, s30, 0x%x" % OFF_PHIQ)
        for rt in range(4):
            a("s_add_u32 s31, s30, %d" % (rt * 32768))
            for b in range(2):
                vm.issue("pq%d_%d" % (hh, rt), "buffer_load_dwordx4 %s, v5, s[8:11], s31 offen offset:%d" % (vr(hb + 32 + (rt * 2 + b) * 4, 4), b * 1024))
        a("s_mul_i32 s30, s27, 28")
        a("s_lshl_b32 s31, s23, 2")
        a("s_add_u32 s30, s30, s31")
        a("s_lshl_b32 s30, s30, 10")
        a("s_add_u32 s30, s30, 0x%x" % OFF_WO)
        for ct in range(4):
            vm.issue("wo%d" % hh, "buffer_load_dwordx4 %s, v5, s[8:11], s30 offen offset:%d" % (vr(hb + 64 + ct * 4, 4), ct * 1024))
    a("s_lshl_b32 s30, s26, 10")
    a("s_add_u32 s30, s30, s52")
    vm.issue("res", "buffer_load_dwordx4 v[12:15], v5, s[8:11], s30 offen")
    OF = 248
    DN = 252
    for hh in range(2):
        hb = HB(hh)
        vm.wait("kv%d" % hh)
        stamp(a)
        for i in range(16):
            a("v_cvt_pk_bf16_f32 v%d, v%d, v%d" % (hb + i, hb + 2 * i, hb + 2 * i + 1))

        def num_mfma(rt):
            nb = hb + 16 + (rt & 1) * 8
            vm.wait("pq%d_%d" % (hh, rt))
            for dt in range(2):
                for b in range(2):
                    d = vr(nb + dt * 4, 4)
                    a("%s %s, %s, %s, %s" % (MF, d, vr(hb + (b * 2 + dt) * 4, 4), vr(hb + 32 + (rt * 2 + b) * 4, 4), "0" if b == 0 else d))

        num_mfma(0)
        for rt in range(4):
            if rt < 3:
                num_mfma(rt + 1)
            nb = hb + 16 + (rt & 1) * 8
            a("v_cndmask_b32 v%d, 0, v%d, s[40:41]" % (DN, nb + 4))
            butterfly(a, [DN], [DN + 1], "v_add_f32")
            a("v_add_f32 v%d, 0x358637bd, v%d" % (DN, DN))
            a("v_rcp_f32 v%d, v%d" % (DN, DN))
            for i in range(8):
                a("v_mul_f32 v%d, v%d, v%d" % (nb + i, nb + i, DN))
            of = 240 + (rt & 1) * 4
            for i in range(4):
                a("v_cvt_pk_bf16_f32 v%d, v%d, v%d" % (of + i, nb + 2 * i, nb + 2 * i + 1))
            if rt == 0:
                vm.wait("wo%d" % hh)
            for ct in range(4):
                d = vr(ACC + (rt * 4 + ct) * 4, 4)
                a("%s %s, %s, %s, %s" % (MF, d, vr(hb + 64 + ct * 4, 4), vr(of, 4), "0" if hh == 0 else d))
    stamp(a)
    reduce_store(a, vm, ACC, RES, name, 2, OFF_X1, OFF_ST1, False)
    for layer in range(2):
        kdefs["k2l%d_kernel" % layer] = (256, 56, 0)


def gen_k3(a):
    name = "k3_kernel"
    kbegin(a, name)
    vm = VM(a)
    LDS_ST = 112 * 1024
    PF = 4
    a("s_cmp_ge_u32 s2, 224")
    a("s_cbranch_scc1 %s_done" % name)
    stamp(a)
    a("s_load_dwordx2 s[6:7], s[0:1], 80")
    a("v_and_b32 v1, 63, v0")
    a("v_lshrrev_b32 v2, 6, v0")
    a("v_readfirstlane_b32 s3, v2")
    a("v_and_b32 v3, 15, v1")
    a("v_lshrrev_b32 v4, 4, v1")
    a("v_lshlrev_b32 v5, 4, v1")
    stats_addr(a, 6, 7, 3, 4, 2)
    a("s_and_b32 s20, s2, 7")
    a("s_lshr_b32 s21, s2, 3")
    a("s_and_b32 s22, s20, 3")
    a("s_lshl_b32 s22, s22, 2")
    a("s_and_b32 s23, s21, 3")
    a("s_add_u32 s22, s22, s23")
    a("s_lshr_b32 s23, s20, 2")
    a("s_mul_i32 s23, s23, 7")
    a("s_lshr_b32 s24, s21, 2")
    a("s_add_u32 s23, s23, s24")
    a("s_lshl_b32 s23, s23, 3")
    a("s_add_u32 s23, s23, s3")
    a("s_lshl_b32 s24, s22, 3")
    a("s_add_u32 s24, s24, s3")
    a("s_waitcnt lgkmcnt(0)")
    srd(a, 8, 6, 0, WS_TOTAL)
    a("s_mul_i32 s26, s3, %d" % (14 * 1024))
    a("s_mul_i32 s27, s24, %d" % (14 * 1024))
    a("s_add_u32 s27, s27, 0x%x" % OFF_X1)
    W = 136
    ACC = 8
    XB = 72
    CS = 248
    a("s_mul_i32 s29, s23, %d" % (28 * 1024))
    a("s_add_u32 s29, s29, 0x%x" % OFF_WGU)
    for c in range(7):
        a("s_add_u32 s%d, s29, %d" % (44 + c, c * 4096))

    def xdma(lo, hi, tag):
        for c0 in range(lo, hi, 4):
            n = min(4, hi - c0)
            a("s_add_u32 s28, s26, %d" % (c0 * 1024))
            a("s_mov_b32 m0, s28")
            a("s_add_u32 s29, s27, %d" % (c0 * 1024))
            for i in range(n):
                vm.issue(tag, "buffer_load_dwordx4 v5, s[8:11], s29 offen offset:%d lds" % (i * 1024))

    def wload(ks):
        for mat in range(2):
            vm.issue("w%d" % ks, "buffer_load_dwordx4 %s, v5, s[8:11], s%d offen offset:%d" % (vr(W + (ks * 2 + mat) * 4, 4), 44 + ks // 2, ((ks & 1) * 2 + mat) * 1024))

    S = ACC
    xdma(0, 7, "dmaA")
    a("s_mul_i32 s30, s24, %d" % (14 * 128))
    a("s_add_u32 s30, s30, 0x%x" % OFF_ST1)
    stats_load(vm, "st", S, 6, 7, 8, 30)
    wload(0)
    a("s_lshl_b32 s31, s23, 11")
    a("s_add_u32 s31, s31, 0x%x" % OFF_CGU)
    sched = {0: [lambda: wload(1), lambda: wload(2), lambda: xdma(7, 9, "dmaB")],
             1: [lambda: wload(3), lambda: xdma(9, 11, "dmaB")],
             2: [lambda: wload(4), lambda: xdma(11, 13, "dmaB")],
             3: [lambda: wload(5), lambda: xdma(13, 14, "dmaB"), lambda: wload(6)],
             4: [lambda: wload(7), lambda: wload(8)],
             10: [lambda: vm.issue("cs", "buffer_load_dwordx4 v[248:251], v5, s[8:11], s31 offen"),
                  lambda: vm.issue("cs", "buffer_load_dwordx4 v[252:255], v5, s[8:11], s31 offen offset:1024")]}
    for ks in range(5, 10):
        sched[ks] = [lambda ks=ks: wload(ks + 4)]
    a("v_add_u32 v6, 57344, v5")
    vm.wait("st")
    stats_finish(a, S, S + 10, S + 11, S + 8, S + 9)
    a("s_lshl_b32 s33, s3, 7")
    a("s_add_u32 s33, s33, %d" % LDS_ST)
    a("v_lshlrev_b32 v2, 3, v3")
    a("v_add_u32 v2, s33, v2")
    a("ds_write_b64 v2, %s" % vr(S + 10, 2))
    a("s_waitcnt lgkmcnt(0)")
    stamp(a)
    a("s_barrier")
    stamp(a)

    def xfrag(dst, rt, ks):
        off = (rt * 14 + ks) * 1024
        if off < 57344:
            a("ds_read_b128 %s, v5 offset:%d" % (vr(dst, 4), off))
        else:
            a("ds_read_b128 %s, v6 offset:%d" % (vr(dst, 4), off - 57344))

    for rt in range(8):
        xfrag(XB + rt * 4, rt, 0)
    for ks in range(14):
        cur = XB + (ks & 1) * 32
        nxt = XB + ((ks + 1) & 1) * 32
        if ks < 13 and ks != 6:
            for rt in range(8):
                xfrag(nxt + rt * 4, rt, ks + 1)
            vm.wait("w%d" % ks, "lgkmcnt(8)")
        else:
            vm.wait("w%d" % ks, "lgkmcnt(0)")
        q = list(sched.get(ks, []))
        for rt in range(8):
            for mat in range(2):
                d = vr(ACC + (rt * 2 + mat) * 4, 4)
                a("%s %s, %s, %s, %s" % (MF, d, vr(W + (ks * 2 + mat) * 4, 4), vr(cur + rt * 4, 4), "0" if ks == 0 else d))
            if q and rt % 2 == 1:
                q.pop(0)()
        assert not q
        if ks == 6:
            vm.wait("dmaB")
            a("s_barrier")
            for rt in range(8):
                xfrag(nxt + rt * 4, rt, ks + 1)
    stamp(a)
    a("v_lshlrev_b32 v2, 3, v3")
    a("v_add_u32 v2, %d, v2" % LDS_ST)
    for rt in range(8):
        a("ds_read_b64 %s, v2 offset:%d" % (vr(XB + 2 * rt, 2), rt * 128))
    a("s_mul_i32 s33, s22, %d" % (8 * 56))
    a("s_lshr_b32 s34, s23, 1")
    a("s_add_u32 s33, s33, s34")
    a("s_lshl_b32 s33, s33, 10")
    a("s_and_b32 s34, s23, 1")
    a("s_lshl_b32 s34, s34, 3")
    a("s_add_u32 s33, s33, s34")
    a("s_add_u32 s33, s33, 0x%x" % OFF_H)
    a("v_mov_b32 v7, 0xbfb8aa3b")
    a("s_waitcnt vmcnt(0) lgkmcnt(0)")
    T = XB + 16
    for rt in range(8):
        mb, ri = XB + 2 * rt, XB + 2 * rt + 1
        g = ACC + rt * 8
        u = g + 4
        t = T + (rt & 1) * 8
        a("v_mul_f32 v%d, v%d, v7" % (t, ri))
        for r in range(4):
            a("v_fma_f32 v%d, -v%d, v%d, v%d" % (g + r, mb, CS + r, g + r))
        for r in range(4):
            a("v_fma_f32 v%d, -v%d, v%d, v%d" % (u + r, mb, CS + 4 + r, u + r))
        for r in range(4):
            a("v_mul_f32 v%d, v%d, v%d" % (g + r, g + r, t))
        for r in range(4):
            a("v_exp_f32 v%d, v%d" % (g + r, g + r))
        for r in range(4):
            a("v_mul_f32 v%d, v%d, v%d" % (u + r, u + r, ri))
        for r in range(4):
            a("v_add_f32 v%d, 1.0, v%d" % (g + r, g + r))
        for r in range(4):
            a("v_rcp_f32 v%d, v%d" % (g + r, g + r))
        a("s_add_u32 s34, s33, %d" % (rt * 56 * 1024))
        for r in range(4):
            a("v_mul_f32 v%d, v%d, v%d" % (g + r, g + r, u + r))
        a("v_cvt_pk_bf16_f32 v%d, v%d, v%d" % (t + 4, g, g + 1))
        a("v_cvt_pk_bf16_f32 v%d, v%d, v%d" % (t + 5, g + 2, g + 3))
        a("buffer_store_dwordx2 %s, v5, s[8:11], s34 offen%s" % (vr(t + 4, 2), STF))
    stamp(a)
    stamp_flush(a, 3, 6)
    a.label("%s_done" % name)
    a("s_endpgm")
    kdefs[name] = (256, 56, 0)


def gen_k4(a):
    name = "k4"
    stubs(a, "k4", [{55: 0}, {55: 1}], "k4_body")
    vm = VM(a)
    a("s_cmp_ge_u32 s2, 224")
    a("s_cbranch_scc1 %s_done" % name)
    stamp(a)
    a("s_load_dwordx2 s[4:5], s[0:1], 64")
    a("s_load_dwordx2 s[6:7], s[0:1], 80")
    tile_prologue(a)
    a("s_waitcnt lgkmcnt(0)")
    srd(a, 8, 6, 0, WS_TOTAL)
    srd(a, 16, 4, 0, SZ_X)
    RES = 12
    a("s_mul_i32 s27, s3, 7")
    a("s_mul_i32 s28, s23, 224")
    a("s_add_u32 s28, s28, s27")
    a("s_lshl_b32 s28, s28, 10")
    a("s_add_u32 s28, s28, 0x%x" % OFF_WD)
    a("s_mul_i32 s29, s22, 224")
    a("s_add_u32 s29, s29, s27")
    a("s_lshl_b32 s29, s29, 10")
    a("s_add_u32 s29, s29, 0x%x" % OFF_H)
    for c in range(4):
        a("s_add_u32 s%d, s28, %d" % (36 + c, c * 56 * 1024))
        a("s_add_u32 s%d, s29, %d" % (40 + c, c * 56 * 1024))
        a("s_add_u32 s%d, s28, %d" % (44 + c, c * 56 * 1024 + 4096))
        a("s_add_u32 s%d, s29, %d" % (48 + c, c * 56 * 1024 + 4096))
    ACC = 16
    BUF = 80
    NST = 5

    def issue(i):
        st = BUF + (i % NST) * 32
        for c in range(4):
            sW = (36 if i < 4 else 44) + c
            vm.issue("s%d" % i, "buffer_load_dwordx4 %s, v5, s[8:11], s%d offen offset:%d" % (vr(st + c * 4, 4), sW, (i % 4) * 1024))
        for c in range(4):
            sH = (40 if i < 4 else 48) + c
            vm.issue("s%d" % i, "buffer_load_dwordx4 %s, v5, s[8:11], s%d offen offset:%d" % (vr(st + 16 + c * 4, 4), sH, (i % 4) * 1024))

    for i in range(NST):
        issue(i)
    a("s_lshl_b32 s30, s26, 10")
    a("s_add_u32 s30, s30, 0x%x" % OFF_X1)
    vm.issue("res", "buffer_load_dwordx4 v[12:15], v5, s[8:11], s30 offen")
    for i in range(7):
        vm.wait("s%d" % i)
        stamp(a)
        st = BUF + (i % NST) * 32
        for rt in range(4):
            for ct in range(4):
                d = vr(ACC + (rt * 4 + ct) * 4, 4)
                a("%s %s, %s, %s, %s" % (MF, d, vr(st + ct * 4, 4), vr(st + 16 + rt * 4, 4), "0" if i == 0 else d))
        if i + NST < 7:
            issue(i + NST)
    stamp(a)
    reduce_store(a, vm, ACC, RES, name, 4, OFF_X2, OFF_ST2, True)
    for layer in range(2):
        kdefs["k4l%d_kernel" % layer] = (240, 56, 0)


def emit_file(a, dst):
    hdr = open("interleave_layers__linear_kernel_hedgehog__glu_gated_glu__prompt.s.ref").read().split("\n")
    head = [l for l in hdr if l.startswith(";") and "@launch" not in l and "Override launch" not in l and "grid=ceil" not in l]
    out = head[:]
    for (name, grid, block, lds, vg, sg) in kernels:
        kdefs[name] = (vg, sg, 0)
        launches.append((name, grid, block, lds))
    for (name, grid, block, lds) in launches:
        out.append("; @launch kernel=%s grid=(%d,1,1) block=(%d,1,1) lds=%d" % (name, grid, block, lds))
    out.append('.amdgcn_target "amdgcn-amd-amdhsa--gfx950"')
    out.append(".text")
    out.append(a.text())
    out.append('.section .rodata,"a"')
    for name, (vg, sg, ag) in kdefs.items():
        acc = (vg + 3) // 4 * 4
        out.append(".p2align 6")
        out.append(".amdhsa_kernel %s" % name)
        out.append("  .amdhsa_next_free_vgpr %d" % (acc + ag if ag else vg))
        out.append("  .amdhsa_next_free_sgpr %d" % (100 if STAMP else sg))
        out.append("  .amdhsa_accum_offset %d" % acc)
        out.append("  .amdhsa_group_segment_fixed_size 0")
        out.append("  .amdhsa_kernarg_size 88")
        out.append("  .amdhsa_user_sgpr_count 2")
        out.append("  .amdhsa_user_sgpr_kernarg_segment_ptr 1")
        out.append("  .amdhsa_system_sgpr_workgroup_id_x 1")
        out.append("  .amdhsa_float_denorm_mode_32 3")
        out.append(".end_amdhsa_kernel")
    open(dst, "w").write("\n".join(out) + "\n")
    print("wrote", dst, "ws total", WS_TOTAL)


def main():
    a = Asm()
    gen_prep(a)
    gen_k1(a)
    gen_k2(a)
    gen_k3(a)
    gen_k4(a)
    a.raw("code_end:")
    launches.append(("prep_kernel", NPREP, 256, 32768))
    for layer in range(2):
        launches.append(("k1l%d_kernel" % layer, 256, 512, 86016 + 65536))
        launches.append(("k2l%d_kernel" % layer, 224, 512, 131072))
        launches.append(("k3_kernel", 224, 512, 113 * 1024))
        launches.append(("k4l%d_kernel" % layer, 224, 512, 131072))
    dst = sys.argv[1] if len(sys.argv) > 1 else "interleave_layers__linear_kernel_hedgehog__glu_gated_glu__prompt.s"
    emit_file(a, dst)


if __name__ == "__main__":
    main()
```

```python
import sys
import os
from asmlib import Asm, vr, sr

OFF_WQKV = 0
SZ_WQKV = 16 * 84 * 1024
OFF_CQKV = OFF_WQKV + SZ_WQKV
SZ_CQKV = 16 * 6 * 1024
OFF_WPHI = OFF_CQKV + SZ_CQKV
SZ_WPHI = 16 * 2 * 1024
OFF_WO = OFF_WPHI + SZ_WPHI
SZ_WO = 16 * 28 * 1024
OFF_WGU = OFF_WO + SZ_WO
SZ_WGU = 112 * 14 * 2 * 1024
OFF_CGU = OFF_WGU + SZ_WGU
SZ_CGU = 112 * 2 * 1024
OFF_WD = OFF_CGU + SZ_CGU
SZ_WD = 28 * 56 * 1024
OFF_KV = OFF_WD + SZ_WD
SZ_KV = 2 * 16 * 8192
OFF_PHIQ = OFF_KV + SZ_KV
SZ_PHIQ = 128 * 16 * 2 * 1024
SZ_X = 2048 * 448 * 2
OFF_X0 = OFF_PHIQ + SZ_PHIQ
OFF_X1 = OFF_X0 + SZ_X
OFF_X2 = OFF_X1 + SZ_X
SZ_ST = 128 * 14 * 128
OFF_ST0 = OFF_X2 + SZ_X
OFF_ST1 = OFF_ST0 + SZ_ST
OFF_ST2 = OFF_ST1 + SZ_ST
OFF_H = OFF_ST2 + SZ_ST
SZ_H = 128 * 56 * 1024
OFF_FLAG = OFF_H + SZ_H
SZ_FLAG = 16384
WS_TOTAL = OFF_FLAG + SZ_FLAG

OOB = 0x40000000
LOG2E = 0x3FB8AA3B
ONES_BF = 0x3F803F80
MF = "v_mfma_f32_16x16x32_bf16"

kernels = []
kdefs = {}
launches = []
STAMP = int(os.environ.get("STAMP", "0"))
STF = os.environ.get("STF", "")
OFF_STAMP = 32 << 20
_nst = [0]


def stamp(a):
    if not STAMP:
        return
    i = _nst[0]
    a("%s s[%d:%d]" % ("s_memrealtime" if STAMP == 2 else "s_memtime", 60 + 2 * i, 61 + 2 * i))
    _nst[0] += 1


def stamp_flush(a, kidx, wsp):
    if not STAMP:
        return
    n = _nst[0]
    _nst[0] = 0
    a("s_waitcnt vmcnt(0) lgkmcnt(0)")
    if STAMP == 2:
        a("s_cmp_lg_u32 s3, 0")
        a("s_cbranch_scc1 st_skip_%d" % kidx)
        srd(a, 92, wsp, OFF_STAMP + kidx * 65536, 65536)
        a("s_lshl_b32 s96, s2, 7")
    else:
        a("s_cmp_ge_u32 s2, 8")
        a("s_cbranch_scc1 st_skip_%d" % kidx)
        srd(a, 92, wsp, OFF_STAMP + kidx * 16384, 16384)
        a("s_lshl_b32 s96, s2, 3")
        a("s_add_u32 s96, s96, s3")
        a("s_lshl_b32 s96, s96, 7")
    a("v_mov_b32 v1, 0")
    for i in range(n):
        a("v_mov_b32 v2, s%d" % (60 + 2 * i))
        a("buffer_store_dword v2, v1, s[92:95], s96 offen offset:%d" % (4 * i))
    a("s_waitcnt vmcnt(0)")
    a.label("st_skip_%d" % kidx)


class VM:
    def __init__(self, a):
        self.a = a
        self.q = []

    def issue(self, tag, text):
        self.a(text)
        self.q.append(tag)

    def count_after(self, tag):
        idx = max(i for i, t in enumerate(self.q) if t == tag)
        return len(self.q) - 1 - idx

    def wait(self, tag, extra=""):
        n = min(self.count_after(tag), 63)
        self.a(("s_waitcnt vmcnt(%d) " % n + extra).strip())


class Rec:
    def __init__(self):
        self.items = []

    def __call__(self, text):
        self.items.append(("i", text))

    def issue(self, tag, text):
        self.items.append(("v", tag, text))

    def wait(self, tag, extra=""):
        self.items.append(("w", tag, extra))


def play(a, vm, it):
    if it[0] == "i":
        a(it[1])
    elif it[0] == "v":
        vm.issue(it[1], it[2])
    else:
        vm.wait(it[1], it[2])


def interleave(a, vm, main, side, per):
    acc = 0.0
    j = 0
    for it in main.items:
        play(a, vm, it)
        if it[0] == "i" and it[1].startswith("v_mfma"):
            acc += per
            while acc >= 1.0 and j < len(side.items):
                play(a, vm, side.items[j])
                j += 1
                acc -= 1.0
    while j < len(side.items):
        play(a, vm, side.items[j])
        j += 1


def kbegin(a, name):
    a.raw(".globl %s" % name)
    a.raw(".p2align 8")
    a.raw(".type %s,@function" % name)
    a.raw(name + ":")
    a.hist = []


def srd(a, d, p, off, size):
    if off:
        a("s_add_u32 s%d, s%d, 0x%x" % (d, p, off))
        a("s_addc_u32 s%d, s%d, 0" % (d + 1, p + 1))
        a("s_and_b32 s%d, s%d, 0xffff" % (d + 1, d + 1))
    else:
        a("s_mov_b32 s%d, s%d" % (d, p))
        a("s_and_b32 s%d, s%d, 0xffff" % (d + 1, p + 1))
    a("s_mov_b32 s%d, 0x%x" % (d + 2, size))
    a("s_mov_b32 s%d, 0x20000" % (d + 3))


def kmapD_slot(j):
    return j if j < 4 else 12 + j


def butterfly(a, regs, tmp, op):
    for swap in ("v_permlane16_swap_b32", "v_permlane32_swap_b32"):
        for r, t in zip(regs, tmp):
            a("v_mov_b32 v%d, v%d" % (t, r))
        for r, t in zip(regs, tmp):
            a("%s v%d, v%d" % (swap, r, t))
        for r, t in zip(regs, tmp):
            a("%s v%d, v%d, v%d" % (op, r, r, t))


def ln_finish(a, vsum, vsq, vmb, vrinv, t0, t1):
    a("v_mul_f32 v%d, 0x3b124925, v%d" % (vsum, vsum))
    a("v_mul_f32 v%d, 0x3b124925, v%d" % (vsq, vsq))
    a("v_fma_f32 v%d, -v%d, v%d, v%d" % (vsq, vsum, vsum, vsq))
    a("v_max_f32 v%d, 0, v%d" % (vsq, vsq))
    a("v_cvt_pk_bf16_f32 v%d, v%d, v%d" % (t0, vsum, vsq))
    a("v_lshlrev_b32 v%d, 16, v%d" % (vmb, t0))
    a("v_and_b32 v%d, 0xffff0000, v%d" % (t1, t0))
    a("v_add_f32 v%d, 0x3727c5ac, v%d" % (t1, t1))
    a("v_cvt_pk_bf16_f32 v%d, v%d, v%d" % (t0, t1, t1))
    a("v_lshlrev_b32 v%d, 16, v%d" % (t1, t0))
    a("v_sqrt_f32 v%d, v%d" % (t1, t1))
    a("v_cvt_pk_bf16_f32 v%d, v%d, v%d" % (t0, t1, t1))
    a("v_lshlrev_b32 v%d, 16, v%d" % (t1, t0))
    a("v_rcp_f32 v%d, v%d" % (vrinv, t1))


def stats_addr(a, vst, vst3, vl15, vg, vtmp):
    a("v_lshlrev_b32 v%d, 7, v%d" % (vst, vg))
    a("v_lshlrev_b32 v%d, 3, v%d" % (vtmp, vl15))
    a("v_add_u32 v%d, v%d, v%d" % (vst, vst, vtmp))
    a("v_mov_b32 v%d, 0x%x" % (vtmp, OOB))
    a("v_cmp_gt_u32 vcc, 2, v%d" % vg)
    a("v_cndmask_b32 v%d, v%d, v%d, vcc" % (vst3, vtmp, vst))


def stats_load(vm, tag, dst, vst, vst3, s_srd, s_off):
    for i in range(4):
        vm.issue(tag, "buffer_load_dwordx2 %s, v%d, %s, s%d offen offset:%d" % (vr(dst + 2 * i, 2), vst if i < 3 else vst3, sr(s_srd, 4), s_off, i * 512))


def stats_finish(a, src, vmb, vri, t0, t1):
    a("v_add_f32 v%d, v%d, v%d" % (src, src, src + 2))
    a("v_add_f32 v%d, v%d, v%d" % (src + 1, src + 1, src + 3))
    a("v_add_f32 v%d, v%d, v%d" % (src + 4, src + 4, src + 6))
    a("v_add_f32 v%d, v%d, v%d" % (src + 5, src + 5, src + 7))
    a("v_add_f32 v%d, v%d, v%d" % (src, src, src + 4))
    a("v_add_f32 v%d, v%d, v%d" % (src + 1, src + 1, src + 5))
    butterfly(a, [src, src + 1], [t0, t1], "v_add_f32")
    ln_finish(a, src, src + 1, vmb, vri, t0, t1)


def softmax_pair(a, P, T, outp, outm, sg3, vL):
    E = T[0:8]
    G = T[8:16]
    mx, mn, t0, t1 = T[16], T[17], T[18], T[19]
    a("v_max3_f32 v%d, v%d, v%d, v%d" % (t0, P[4], P[5], P[6]))
    a("v_min3_f32 v%d, v%d, v%d, v%d" % (t1, P[4], P[5], P[6]))
    a("v_max_f32 v%d, v%d, v%d" % (t0, t0, P[7]))
    a("v_min_f32 v%d, v%d, v%d" % (t1, t1, P[7]))
    a("v_cndmask_b32 v%d, v%d, v%d, %s" % (t0, t0, P[0], sg3))
    a("v_cndmask_b32 v%d, v%d, v%d, %s" % (t1, t1, P[0], sg3))
    a("v_max3_f32 v%d, v%d, v%d, v%d" % (mx, P[0], P[1], P[2]))
    a("v_min3_f32 v%d, v%d, v%d, v%d" % (mn, P[0], P[1], P[2]))
    a("v_max3_f32 v%d, v%d, v%d, v%d" % (mx, mx, P[3], t0))
    a("v_min3_f32 v%d, v%d, v%d, v%d" % (mn, mn, P[3], t1))
    for swap in ("v_permlane16_swap_b32", "v_permlane32_swap_b32"):
        a("v_mov_b32 v%d, v%d" % (t0, mx))
        a("v_mov_b32 v%d, v%d" % (t1, mn))
        a("%s v%d, v%d" % (swap, mx, t0))
        a("%s v%d, v%d" % (swap, mn, t1))
        a("v_max_f32 v%d, v%d, v%d" % (mx, mx, t0))
        a("v_min_f32 v%d, v%d, v%d" % (mn, mn, t1))
    a("v_mul_f32 v%d, v%d, v%d" % (mx, mx, vL))
    a("v_mul_f32 v%d, v%d, v%d" % (mn, mn, vL))
    for i in range(8):
        a("v_fma_f32 v%d, v%d, v%d, -v%d" % (E[i], P[i], vL, mx))
        a("v_fma_f32 v%d, -v%d, v%d, v%d" % (G[i], P[i], vL, mn))
    for i in range(8):
        a("v_exp_f32 v%d, v%d" % (E[i], E[i]))
        a("v_exp_f32 v%d, v%d" % (G[i], G[i]))
    for i in range(4, 8):
        a("v_cndmask_b32 v%d, v%d, 0, %s" % (E[i], E[i], sg3))
        a("v_cndmask_b32 v%d, v%d, 0, %s" % (G[i], G[i], sg3))
    sp, sm = mx, mn
    a("v_add_f32 v%d, v%d, v%d" % (sp, E[0], E[1]))
    a("v_add_f32 v%d, v%d, v%d" % (sm, G[0], G[1]))
    for i in range(2, 8):
        a("v_add_f32 v%d, v%d, v%d" % (sp, sp, E[i]))
        a("v_add_f32 v%d, v%d, v%d" % (sm, sm, G[i]))
    butterfly(a, [sp, sm], [t0, t1], "v_add_f32")
    a("v_rcp_f32 v%d, v%d" % (sp, sp))
    a("v_rcp_f32 v%d, v%d" % (sm, sm))
    for i in range(8):
        a("v_mul_f32 v%d, v%d, v%d" % (E[i], E[i], sp))
        a("v_mul_f32 v%d, v%d, v%d" % (G[i], G[i], sm))
    for i in range(4):
        a("v_cvt_pk_bf16_f32 v%d, v%d, v%d" % (outp + i, E[2 * i], E[2 * i + 1]))
        a("v_cvt_pk_bf16_f32 v%d, v%d, v%d" % (outm + i, G[2 * i], G[2 * i + 1]))


NPREP = 267


def gen_prep(a):
    name = "prep_kernel"
    kbegin(a, name)
    a("s_cmp_ge_u32 s2, %d" % NPREP)
    a("s_cbranch_scc1 prep_done")
    stamp(a)
    a("s_load_dwordx16 s[4:19], s[0:1], 0")
    a("s_load_dwordx2 s[20:21], s[0:1], 80")
    a("v_and_b32 v1, 63, v0")
    a("v_lshrrev_b32 v2, 6, v0")
    a("v_readfirstlane_b32 s3, v2")
    a("v_and_b32 v3, 15, v1")
    a("v_lshrrev_b32 v4, 4, v1")
    a("v_lshlrev_b32 v5, 4, v1")
    a("v_mov_b32 v6, 0x%x" % OOB)
    for i in range(4):
        a("v_mov_b32 v%d, 0x%x" % (8 + i, ONES_BF))
    a("v_cmp_eq_u32 s[40:41], 3, v4")
    a("s_and_b32 s46, s3, 1")
    a("s_lshr_b32 s47, s3, 1")
    a("v_lshrrev_b32 v7, 2, v3")
    a("v_lshl_add_u32 v7, v4, 2, v7")
    a("v_lshlrev_b32 v7, 6, v7")
    a("v_and_b32 v12, 3, v3")
    a("v_lshl_add_u32 v7, v12, 3, v7")
    a("s_lshl_b32 s48, s46, 5")
    a("v_add_u32 v7, s48, v7")
    a("v_lshrrev_b32 v13, 2, v1")
    a("v_and_b32 v14, 3, v1")
    a("v_lshlrev_b32 v14, 4, v14")
    a("s_getpc_b64 s[56:57]")
    a.raw("prep_pc:")
    a("s_lshl_b32 s58, s3, 10")
    a("v_add_u32 v15, s58, v5")
    a("v_mov_b32 v16, code_end - prep_pc - 16")
    for i in range(2):
        a("v_add_u32 v17, %d, v15" % (i * 4096))
        a("v_min_u32 v17, v17, v16")
        a("global_load_dwordx4 v[160:163], v17, s[56:57]")
    a("s_cmp_ge_u32 s2, 16")
    a("s_cbranch_scc1 prep_nopf")
    for i in range(2, 9):
        a("v_add_u32 v17, %d, v15" % (i * 4096))
        a("v_min_u32 v17, v17, v16")
        a("global_load_dwordx4 v[160:163], v17, s[56:57]")
    a.raw("prep_nopf:")
    a("s_waitcnt lgkmcnt(0)")
    srd(a, 24, 20, 0, WS_TOTAL)
    a("s_cmp_lt_u32 s2, 112")
    a("s_cbranch_scc1 prep_wgu")
    a("s_cmp_lt_u32 s2, 160")
    a("s_cbranch_scc1 prep_wqkv")
    a("s_cmp_lt_u32 s2, 216")
    a("s_cbranch_scc1 prep_wd")
    a("s_cmp_lt_u32 s2, 230")
    a("s_cbranch_scc1 prep_wo")
    a("s_cmp_lt_u32 s2, 262")
    a("s_cbranch_scc1 prep_x")
    a("s_cmp_lt_u32 s2, 263")
    a("s_cbranch_scc1 prep_wphi")
    a("s_branch prep_zero")

    FR = 32
    CSL = 29696

    def stage(RS):
        a("v_mul_u32_u24 v16, %d, v13" % RS)
        a("v_add_u32 v16, v16, v14")
        a("s_mul_i32 s36, s3, %d" % (7 * 16 * RS))
        a("s_add_u32 s36, s36, s35")
        a("s_mul_i32 s37, s3, %d" % (7 * 1024))
        for i in range(7):
            a("s_mov_b32 m0, s37")
            a("buffer_load_dwordx4 v16, s[28:31], s36 offen lds")
            if i < 6:
                a("s_add_u32 s36, s36, %d" % (16 * RS))
                a("s_add_u32 s37, s37, 1024")
        a("s_waitcnt vmcnt(0)")
        if STAMP:
            a("s_memtime s[62:63]")
        a("s_barrier")

    def trfrags(n, step, half_off):
        a("s_mul_i32 s36, s47, %d" % half_off)
        a("v_add_u32 v17, s36, v7")
        for j in range(n):
            a("ds_read_b64_tr_b16 %s, v17 offset:%d" % (vr(FR + 4 * j, 2), j * step))
            a("ds_read_b64_tr_b16 %s, v17 offset:%d" % (vr(FR + 4 * j + 2, 2), j * step + 1024))
        a("s_waitcnt lgkmcnt(0)")
        if STAMP:
            a("s_memtime s[64:65]")

    def store_frags(n, s_dst, stride):
        for j in range(n):
            a("s_add_u32 s37, s%d, 0x%x" % (s_dst, j * stride))
            a("buffer_store_dwordx4 %s, v5, s[24:27], s37 offen" % vr(FR + 4 * j, 4))
        if STAMP:
            a("s_memtime s[66:67]")

    def colsum(s_cdst, tag):
        for j in range(7):
            a("%s v[16:19], %s, v[8:11], %s" % (MF, vr(FR + 4 * j, 4), "0" if j == 0 else "v[16:19]"))
        a("s_lshl_b32 s36, s46, 10")
        a("s_add_u32 s36, s36, %d" % CSL)
        a("v_add_u32 v20, s36, v5")
        a("s_cmp_eq_u32 s47, 0")
        a("s_cbranch_scc1 prep_cs0_%s" % tag)
        a("ds_write_b128 v20, v[16:19]")
        a("s_waitcnt lgkmcnt(0)")
        a("s_barrier")
        a("s_branch prep_done")
        a.label("prep_cs0_%s" % tag)
        a("s_barrier")
        a("ds_read_b128 v[20:23], v20")
        a("s_waitcnt lgkmcnt(0)")
        for i in range(4):
            a("v_add_f32 v%d, v%d, v%d" % (16 + i, 16 + i, 20 + i))
        a("buffer_store_dwordx4 v[16:19], v5, s[24:27], s%d offen" % s_cdst)
        a("s_branch prep_done")

    a.label("prep_wgu")
    a("s_lshr_b32 s32, s2, 4")
    a("s_lshl_b32 s32, s32, 3")
    a("s_and_b32 s33, s2, 7")
    a("s_add_u32 s32, s32, s33")
    a("s_and_b32 s34, s32, 1")
    a("s_lshr_b32 s32, s32, 1")
    a("s_lshl_b32 s32, s32, 1")
    a("s_bfe_u32 s33, s2, 0x10003")
    a("s_add_u32 s32, s32, s33")
    a("s_cmp_eq_u32 s34, 0")
    a("s_cselect_b32 s44, s14, s16")
    a("s_cselect_b32 s45, s15, s17")
    srd(a, 28, 44, 0, 448 * 1792 * 2)
    a("s_lshl_b32 s35, s32, 6")
    stage(3584)
    trfrags(7, 2048, 7 * 2048)
    a("s_lshl_b32 s33, s32, 1")
    a("s_add_u32 s33, s33, s46")
    a("s_mul_i32 s39, s33, 14")
    a("s_mul_i32 s38, s47, 7")
    a("s_add_u32 s39, s39, s38")
    a("s_lshl_b32 s39, s39, 1")
    a("s_add_u32 s39, s39, s34")
    a("s_lshl_b32 s39, s39, 10")
    a("s_add_u32 s39, s39, 0x%x" % OFF_WGU)
    store_frags(7, 39, 2048)
    a("s_lshl_b32 s42, s33, 1")
    a("s_add_u32 s42, s42, s34")
    a("s_lshl_b32 s42, s42, 10")
    a("s_add_u32 s42, s42, 0x%x" % OFF_CGU)
    colsum(42, "gu")

    a.label("prep_wqkv")
    srd(a, 28, 6, 0, 448 * 1344 * 2)
    a("s_sub_u32 s32, s2, 112")
    a("s_lshr_b32 s33, s32, 4")
    a("s_and_b32 s34, s32, 15")
    a("s_mul_i32 s35, s33, 896")
    a("s_mul_i32 s38, s34, 56")
    a("s_add_u32 s35, s35, s38")
    stage(2688)
    trfrags(7, 2048, 7 * 2048)
    a("s_mul_i32 s38, s46, 4")
    a("s_sub_u32 s38, 16, s38")
    a("v_cmp_gt_u32 vcc, s38, v3")
    for i in range(28):
        a("v_cndmask_b32 v%d, 0, v%d, vcc" % (FR + i, FR + i))
    a("s_lshl_b32 s33, s33, 1")
    a("s_add_u32 s33, s33, s46")
    a("s_mul_i32 s39, s34, 14")
    a("s_mul_i32 s38, s47, 7")
    a("s_add_u32 s39, s39, s38")
    a("s_mul_i32 s39, s39, 6")
    a("s_add_u32 s39, s39, s33")
    a("s_lshl_b32 s39, s39, 10")
    a("s_add_u32 s39, s39, 0x%x" % OFF_WQKV)
    store_frags(7, 39, 6 * 1024)
    a("s_mul_i32 s42, s34, 6")
    a("s_add_u32 s42, s42, s33")
    a("s_lshl_b32 s42, s42, 10")
    a("s_add_u32 s42, s42, 0x%x" % OFF_CQKV)
    colsum(42, "qkv")

    a.label("prep_wd")
    srd(a, 28, 18, 0, 1792 * 448 * 2)
    a("s_sub_u32 s32, s2, 160")
    a("s_and_b32 s34, s32, 3")
    a("s_lshr_b32 s32, s32, 2")
    a("s_mul_i32 s35, s34, %d" % (448 * 896))
    a("s_lshl_b32 s38, s32, 6")
    a("s_add_u32 s35, s35, s38")
    stage(896)
    trfrags(7, 2048, 7 * 2048)
    a("s_lshl_b32 s33, s32, 1")
    a("s_add_u32 s33, s33, s46")
    a("s_mul_i32 s39, s33, 56")
    a("s_mul_i32 s38, s34, 14")
    a("s_add_u32 s39, s39, s38")
    a("s_mul_i32 s38, s47, 7")
    a("s_add_u32 s39, s39, s38")
    a("s_lshl_b32 s39, s39, 10")
    a("s_add_u32 s39, s39, 0x%x" % OFF_WD)
    store_frags(7, 39, 1024)
    a("s_branch prep_done")

    a.label("prep_wo")
    srd(a, 28, 10, 0, 448 * 448 * 2)
    a("s_sub_u32 s32, s2, 216")
    a("s_lshl_b32 s35, s32, 6")
    stage(896)
    trfrags(8, 28 * 64, 8 * 28 * 64)
    for j in range(8):
        a("v_cndmask_b32 v%d, v%d, 0, s[40:41]" % (FR + 4 * j + 2, FR + 4 * j + 2))
        a("v_cndmask_b32 v%d, v%d, 0, s[40:41]" % (FR + 4 * j + 3, FR + 4 * j + 3))
    a("s_lshl_b32 s33, s32, 1")
    a("s_add_u32 s33, s33, s46")
    a("s_mul_i32 s39, s47, %d" % (8 * 28))
    a("s_add_u32 s39, s39, s33")
    a("s_lshl_b32 s39, s39, 10")
    a("s_add_u32 s39, s39, 0x%x" % OFF_WO)
    store_frags(8, 39, 28 * 1024)
    a("s_branch prep_done")

    RAW = 100
    a.label("prep_wphi")
    srd(a, 28, 8, 0, 16 * 28 * 28 * 2)
    a("s_mul_i32 s35, s3, %d" % (4 * 1568))
    a("v_lshlrev_b32 v16, 1, v3")
    a("v_mul_u32_u24 v17, %d, v4" % (4 * 56))
    a("v_add_u32 v16, v16, v17")
    a("v_add_u32 v16, s35, v16")
    a("v_cndmask_b32 v18, v16, v6, s[40:41]")
    a("v_add_u32 v19, 32, v16")
    a("v_cmp_gt_u32 vcc, 12, v3")
    a("v_cndmask_b32 v19, v6, v19, vcc")
    a("v_cndmask_b32 v20, v19, v6, s[40:41]")
    for hh in range(4):
        for ft in range(2):
            vo = [16] * 4 + [18] * 4 if ft == 0 else [19] * 4 + [20] * 4
            for j in range(8):
                a("s_mov_b32 s36, 0x%x" % (hh * 1568 + kmapD_slot(j) * 56))
                a("buffer_load_ushort v%d, v%d, s[28:31], s36 offen" % (RAW + (hh * 2 + ft) * 8 + j, vo[j]))
    a("s_lshl_b32 s39, s3, 13")
    a("s_add_u32 s39, s39, 0x%x" % OFF_WPHI)
    a("s_waitcnt vmcnt(0)")
    for f in range(8):
        for i in range(4):
            a("v_lshl_or_b32 v%d, v%d, 16, v%d" % (FR + f * 4 + i, RAW + f * 8 + 2 * i + 1, RAW + f * 8 + 2 * i))
    store_frags(8, 39, 1024)
    a("s_branch prep_done")

    a.label("prep_zero")
    a("s_sub_u32 s32, s2, 263")
    a("s_lshl_b32 s39, s32, 16")
    a("s_add_u32 s39, s39, 0x%x" % OFF_KV)
    a("v_lshlrev_b32 v16, 4, v0")
    for i in range(4):
        a("v_mov_b32 v%d, 0" % (20 + i))
    for i in range(16):
        a("s_add_u32 s37, s39, 0x%x" % (i * 4096))
        a("buffer_store_dwordx4 v[20:23], v16, s[24:27], s37 offen")
    a("s_lshl_b32 s37, s32, 12")
    a("s_add_u32 s37, s37, 0x%x" % OFF_FLAG)
    a("buffer_store_dwordx4 v[20:23], v16, s[24:27], s37 offen")
    a("s_branch prep_done")

    a.label("prep_x")
    srd(a, 28, 4, 0, SZ_X)
    a("s_sub_u32 s32, s2, 230")
    a("s_lshl_b32 s32, s32, 2")
    a("s_add_u32 s32, s32, s3")
    a("s_lshl_b32 s33, s32, 4")
    a("v_add_u32 v16, s33, v3")
    a("v_mul_u32_u24 v16, 896, v16")
    a("v_lshlrev_b32 v17, 3, v4")
    a("v_add_u32 v16, v16, v17")
    for ks in range(14):
        a("buffer_load_dwordx2 %s, v16, s[28:31], 0 offen offset:%d" % (vr(FR + 4 * ks, 2), ks * 64))
        a("buffer_load_dwordx2 %s, v16, s[28:31], 0 offen offset:%d" % (vr(FR + 4 * ks + 2, 2), ks * 64 + 32))
    a("s_mul_i32 s39, s32, %d" % (14 * 1024))
    a("s_add_u32 s39, s39, 0x%x" % OFF_X0)
    for i in range(4):
        a("v_mov_b32 v%d, 0" % (12 + i))
    a("s_waitcnt vmcnt(0)")
    store_frags(14, 39, 1024)
    for ks in range(14):
        for r in range(4):
            x = FR + 4 * ks + r
            a("v_dot2c_f32_bf16 v%d, v%d, v8" % (12 + 2 * (r & 1), x))
            a("v_dot2c_f32_bf16 v%d, v%d, v%d" % (13 + 2 * (r & 1), x, x))
    a("v_add_f32 v12, v12, v14")
    a("v_add_f32 v13, v13, v15")
    butterfly(a, [12, 13], [14, 15], "v_add_f32")
    a("v_mov_b32 v14, 0")
    a("v_mov_b32 v15, 0")
    a("v_cmp_eq_u32 vcc, 0, v4")
    a("v_cndmask_b32 v12, 0, v12, vcc")
    a("v_cndmask_b32 v13, 0, v13, vcc")
    stats_addr(a, 18, 19, 3, 4, 17)
    a("s_mul_i32 s39, s32, %d" % (14 * 128))
    a("s_add_u32 s39, s39, 0x%x" % OFF_ST0)
    a("buffer_store_dwordx2 v[12:13], v18, s[24:27], s39 offen")
    a("buffer_store_dwordx2 v[14:15], v18, s[24:27], s39 offen offset:512")
    a("buffer_store_dwordx2 v[14:15], v18, s[24:27], s39 offen offset:1024")
    a("buffer_store_dwordx2 v[14:15], v19, s[24:27], s39 offen offset:1536")
    a.label("prep_done")
    if STAMP:
        _nst[0] = 4
        stamp(a)
        a("s_cmp_ge_u32 s2, %d" % NPREP)
        a("s_cbranch_scc1 prep_done2")
        a("s_mov_b32 s6, s20")
        a("s_mov_b32 s7, s21")
        stamp_flush(a, 0, 6)
        a.label("prep_done2")
    a("s_endpgm")
    kdefs[name] = (168, 64, 0)


def stubs(a, base, params, body):
    for layer, p in enumerate(params):
        kbegin(a, "%sl%d_kernel" % (base, layer))
        for r, v in p.items():
            a("s_mov_b32 s%d, 0x%x" % (r, v))
        a("s_branch %s" % body)
    a.raw(".p2align 6")
    a.label(body)


def gen_k1(a):
    name = "k1"
    stubs(a, "k1", [{52: OFF_X0, 53: OFF_ST0, 54: OFF_KV}, {52: OFF_X2, 53: OFF_ST2, 54: OFF_KV + 131072}], "k1_body")
    vm = VM(a)
    LDS_RED = 86016
    a("s_cmp_ge_u32 s2, 256")
    a("s_cbranch_scc1 %s_done" % name)
    stamp(a)
    a("s_load_dwordx2 s[6:7], s[0:1], 80")
    a("v_and_b32 v1, 63, v0")
    a("v_lshrrev_b32 v2, 6, v0")
    a("v_readfirstlane_b32 s3, v2")
    a("v_and_b32 v3, 15, v1")
    a("v_lshrrev_b32 v4, 4, v1")
    a("v_lshlrev_b32 v5, 4, v1")
    a("v_cmp_eq_u32 s[40:41], 3, v4")
    stats_addr(a, 6, 7, 3, 4, 8)
    a("s_and_b32 s20, s2, 7")
    a("s_lshr_b32 s21, s2, 3")
    a("s_and_b32 s22, s20, 3")
    a("s_lshl_b32 s22, s22, 2")
    a("s_and_b32 s23, s21, 3")
    a("s_add_u32 s22, s22, s23")
    a("s_lshr_b32 s23, s20, 2")
    a("s_lshl_b32 s23, s23, 3")
    a("s_lshr_b32 s24, s21, 2")
    a("s_add_u32 s23, s23, s24")
    a("s_lshl_b32 s24, s22, 3")
    a("s_add_u32 s24, s24, s3")
    a("s_mul_i32 s25, s24, %d" % (14 * 1024))
    a("s_add_u32 s25, s25, s52")
    for c in range(4):
        a("s_add_u32 s%d, s25, %d" % (44 + c, c * 4096))
    a("s_mul_i32 s26, s23, 86016")
    a("s_add_u32 s26, s26, 0x%x" % OFF_WQKV)
    a("s_lshl_b32 s27, s3, 10")
    a("s_add_u32 s26, s26, s27")
    a("s_mul_i32 s30, s24, %d" % (14 * 128))
    a("s_add_u32 s30, s30, s53")
    a("s_mul_i32 s35, s23, 6144")
    a("s_add_u32 s35, s35, 0x%x" % OFF_CQKV)
    a("s_add_u32 s36, s35, 4096")
    a("s_lshl_b32 s32, s23, 11")
    a("s_add_u32 s32, s32, 0x%x" % OFF_WPHI)
    a("s_waitcnt lgkmcnt(0)")
    srd(a, 8, 6, 0, WS_TOTAL)
    X = 200

    def xload(ks):
        vm.issue("x%d" % ks, "buffer_load_dwordx4 %s, v5, s[8:11], s%d offen offset:%d" % (vr(X + ks * 4, 4), 44 + ks // 4, (ks % 4) * 1024))

    def dma(i, tag):
        a("s_mov_b32 m0, s27")
        vm.issue(tag, "buffer_load_dwordx4 v5, s[8:11], s26 offen lds")
        if i < 10:
            a("s_add_u32 s26, s26, 8192")
            a("s_add_u32 s27, s27, 8192")

    for i in range(7):
        xload(i)
        if i < 6:
            dma(i, "dmaA")
    ST = 156
    CS = 112
    WP = 136
    late = []
    for i in range(6, 11):
        late.append(lambda i=i: dma(i, "dmaB"))
        late.append(lambda i=i: xload(i + 1))
    late.append(lambda: xload(12))
    late.append(lambda: xload(13))
    late2 = []
    late2.append(lambda: stats_load(vm, "st", ST, 6, 7, 8, 30))
    for ct in range(6):
        late2.append(lambda ct=ct: vm.issue("cs", "buffer_load_dwordx4 %s, v5, s[8:11], s%d offen offset:%d" % (vr(CS + 4 * ct, 4), 35 if ct < 4 else 36, (ct % 4) * 1024)))
    for ft in range(2):
        late2.append(lambda ft=ft: vm.issue("cs", "buffer_load_dwordx4 %s, v5, s[8:11], s32 offen offset:%d" % (vr(WP + 4 * ft, 4), ft * 1024)))
    ID = 144
    VL = 150
    MB = 152
    RI = 154
    a("v_mov_b32 v%d, 0x%x" % (VL, LOG2E))
    for i in (0, 1, 4, 5):
        a("v_mov_b32 v%d, 0" % (ID + i))
    a("v_lshrrev_b32 v8, 2, v3")
    a("v_cmp_eq_u32 vcc, v8, v4")
    a("v_and_b32 v9, 3, v3")
    a("v_and_b32 v10, 1, v9")
    a("v_lshlrev_b32 v10, 4, v10")
    a("v_mov_b32 v11, 0x3f80")
    a("v_lshlrev_b32 v11, v10, v11")
    a("v_cndmask_b32 v11, 0, v11, vcc")
    a("v_cmp_gt_u32 vcc, 2, v9")
    a("v_cndmask_b32 v%d, 0, v11, vcc" % (ID + 2))
    a("v_cndmask_b32 v%d, v11, 0, vcc" % (ID + 3))
    a("v_add_u32 v8, 43008, v5")
    WB = 16
    ACC = 64

    def wread(ks):
        dst = WB + (ks & 1) * 24
        for ct in range(6):
            off = (ks * 6 + ct) * 1024
            if ks < 7:
                a("ds_read_b128 %s, v5 offset:%d" % (vr(dst + ct * 4, 4), off))
            else:
                a("ds_read_b128 %s, v8 offset:%d" % (vr(dst + ct * 4, 4), off - 43008))

    def mm(ks, q, nq):
        cur = WB + (ks & 1) * 24
        n = 0
        for ct in (2, 3, 4, 5, 0, 1):
            d = vr(ACC + ct * 4, 4)
            a("%s %s, %s, %s, %s" % (MF, d, vr(cur + ct * 4, 4), vr(X + ks * 4, 4), "0" if ks == 0 else d))
            if n < nq and q and ct % 2 == 1:
                q.pop(0)()
                n += 1

    vm.wait("x6")
    stamp(a)
    a("s_barrier")
    wread(0)
    for ks in range(14):
        if ks == 6:
            a("s_waitcnt lgkmcnt(0)")
            mm(ks, late, 3)
            assert not late
            vm.wait("x13")
            stamp(a)
            a("s_barrier")
            wread(7)
            continue
        if ks < 13:
            wread(ks + 1)
            a("s_waitcnt lgkmcnt(6)")
        else:
            a("s_waitcnt lgkmcnt(0)")
        if ks < 6:
            mm(ks, late, 2)
        else:
            mm(ks, late2, 2)
    assert not late2
    stamp(a)

    def ln_apply(ct, dst2):
        b = ACC + ct * 4
        for r in range(4):
            a("v_fma_f32 v%d, -v%d, v%d, v%d" % (b + r, MB, CS + ct * 4 + r, b + r))
        for r in range(4):
            a("v_mul_f32 v%d, v%d, v%d" % (b + r, b + r, RI))
        a("v_cvt_pk_bf16_f32 v%d, v%d, v%d" % (dst2, b, b + 1))
        a("v_cvt_pk_bf16_f32 v%d, v%d, v%d" % (dst2 + 1, b + 2, b + 3))

    vm.wait("cs")
    stats_finish(a, ST, MB, RI, 9, 10)
    KF, VF, QF = 16, 20, 24
    a("v_mov_b32 v9, 0x3f80")
    ln_apply(2, KF)
    ln_apply(3, KF + 2)
    PK = 164
    PQ = 172
    for ft in range(2):
        a("%s %s, %s, %s, 0" % (MF, vr(PK + ft * 4, 4), vr(WP + 4 * ft, 4), vr(KF, 4)))
    ln_apply(4, VF)
    ln_apply(5, VF + 2)
    a("v_cndmask_b32 v%d, v%d, v9, s[40:41]" % (VF + 2, VF + 2))
    ln_apply(0, QF)
    ln_apply(1, QF + 2)
    for ft in range(2):
        a("%s %s, %s, %s, 0" % (MF, vr(PQ + ft * 4, 4), vr(WP + 4 * ft, 4), vr(QF, 4)))
    PH = 28
    TT = list(range(180, 200))
    PKT = 36
    VT = 52
    for i in range(6):
        a("v_mov_b32 v%d, 0" % (PKT + 4 * i + 2))
        a("v_mov_b32 v%d, 0" % (PKT + 4 * i + 3))
    softmax_pair(a, [PK + i for i in range(8)], TT, PH, PH + 4, "s[40:41]", VL)
    TD = 64
    srcs = []
    for b in range(2):
        for t in range(2):
            srcs.append((PH + 4 * b, t, PKT + (2 * b + t) * 4))
    for t in range(2):
        srcs.append((VF, t, VT + t * 4))
    for i, (src, t, dst) in enumerate(srcs):
        idr = vr(ID + 2, 4) if t == 0 else vr(ID, 4)
        a("%s %s, %s, %s, 0" % (MF, vr(TD + 4 * i, 4), vr(src, 4), idr))
    for i, (src, t, dst) in enumerate(srcs):
        a("v_cvt_pk_bf16_f32 v%d, v%d, v%d" % (dst, TD + 4 * i, TD + 4 * i + 1))
        a("v_cvt_pk_bf16_f32 v%d, v%d, v%d" % (dst + 1, TD + 4 * i + 2, TD + 4 * i + 3))
    KVR = 64
    for ft in range(4):
        for dt in range(2):
            a("%s %s, %s, %s, 0" % (MF, vr(KVR + (ft * 2 + dt) * 4, 4), vr(PKT + 4 * ft, 4), vr(VT + 4 * dt, 4)))
    stamp(a)
    a("s_lshl_b32 s33, s3, 13")
    a("s_add_u32 s33, s33, %d" % LDS_RED)
    a("v_add_u32 v9, s33, v5")
    for t in range(8):
        a("ds_write_b128 v9, %s offset:%d" % (vr(KVR + 4 * t, 4), t * 1024))
    a("s_waitcnt lgkmcnt(0)")
    a("s_barrier")
    RD = 64
    a("s_lshl_b32 s33, s3, 10")
    a("s_add_u32 s33, s33, %d" % LDS_RED)
    a("v_lshlrev_b32 v9, 2, v1")
    a("v_add_u32 v10, s33, v9")
    for w in range(8):
        for i in range(4):
            a("ds_read_b32 v%d, v10 offset:%d" % (RD + w * 4 + i, w * 8192 + i * 256))
    a("s_lshl_b32 s33, s23, 13")
    a("s_add_u32 s33, s33, s54")
    a("s_lshl_b32 s34, s3, 10")
    a("s_add_u32 s33, s33, s34")
    PHQ = 16
    softmax_pair(a, [PQ + i for i in range(8)], TT, PHQ, PHQ + 4, "s[40:41]", VL)
    a("s_waitcnt lgkmcnt(0)")
    for step in (16, 8, 4):
        for d in range(RD, RD + step):
            a("v_add_f32 v%d, v%d, v%d" % (d, d, d + step))
    for r in range(4):
        a("buffer_atomic_add_f32 v%d, v9, s[8:11], s33 offen offset:%d" % (RD + r, r * 256))
    a("s_lshl_b32 s33, s24, 4")
    a("s_add_u32 s33, s33, s23")
    a("s_lshl_b32 s33, s33, 11")
    a("s_add_u32 s33, s33, 0x%x" % OFF_PHIQ)
    for b in range(2):
        a("buffer_store_dwordx4 %s, v5, s[8:11], s33 offen offset:%d%s" % (vr(PHQ + 4 * b, 4), b * 1024, STF))
    stamp(a)
    stamp_flush(a, 1, 6)
    a.label("%s_done" % name)
    a("s_endpgm")
    for layer in range(2):
        kdefs["k1l%d_kernel" % layer] = (256, 56, 0)


def tile_map(a):
    a("s_and_b32 s20, s2, 7")
    a("s_lshr_b32 s21, s2, 3")
    a("s_lshl_b32 s22, s20, 2")
    a("s_and_b32 s23, s21, 3")
    a("s_add_u32 s22, s22, s23")
    a("s_lshr_b32 s23, s21, 2")
    a("s_lshr_b32 s24, s3, 1")
    a("s_lshl_b32 s25, s22, 2")
    a("s_add_u32 s24, s24, s25")
    a("s_and_b32 s25, s3, 1")
    a("s_lshl_b32 s26, s23, 1")
    a("s_add_u32 s25, s25, s26")
    a("s_mul_i32 s26, s24, 14")
    a("s_add_u32 s26, s26, s25")


SC = " sc1"


def reduce_store(a, vm, ACC, RES, name, off_out, off_st, final):
    a("s_lshl_b32 s33, s3, 14")
    a("v_add_u32 v9, s33, v5")
    for t in range(16):
        a("ds_write_b128 v9, %s offset:%d" % (vr(ACC + 4 * t, 4), t * 1024))
    a("s_lshl_b32 s33, s3, 11")
    a("v_add_u32 v9, s33, v5")
    a("v_add_u32 v10, 0x10000, v9")
    if final:
        a("s_lshl_b32 s34, s24, 4")
        a("v_add_u32 v7, s34, v3")
        a("v_mul_u32_u24 v7, 896, v7")
        a("s_lshl_b32 s34, s25, 6")
        a("v_lshlrev_b32 v11, 3, v4")
        a("v_add3_u32 v7, v7, v11, s34")
    a("s_lshl_b32 s34, s26, 10")
    a("s_add_u32 s34, s34, 0x%x" % off_out)
    a("s_lshl_b32 s35, s26, 7")
    a("s_add_u32 s35, s35, 0x%x" % off_st)
    a("v_lshlrev_b32 v8, 3, v3")
    a("v_mov_b32 v11, 0x%x" % ONES_BF)
    a("s_waitcnt lgkmcnt(0)")
    a("s_barrier")
    for w in range(8):
        for t in range(2):
            base = 9 if w < 4 else 10
            a("ds_read_b128 %s, v%d offset:%d" % (vr(ACC + (w * 2 + t) * 4, 4), base, (w & 3) * 16384 + t * 1024))
    a("s_waitcnt lgkmcnt(8)")
    for base in range(0, 16, 8):
        for i in range(8):
            d = ACC + base + i
            a("v_add_f32 v%d, v%d, v%d" % (d, d, d + 16))
    a("s_waitcnt lgkmcnt(0)")
    for base in range(32, 48, 8):
        for i in range(8):
            d = ACC + base + i
            a("v_add_f32 v%d, v%d, v%d" % (d, d, d + 16))
    for i in range(8):
        a("v_add_f32 v%d, v%d, v%d" % (ACC + i, ACC + i, ACC + 8 + i))
        a("v_add_f32 v%d, v%d, v%d" % (ACC + 32 + i, ACC + 32 + i, ACC + 40 + i))
    for i in range(8):
        a("v_add_f32 v%d, v%d, v%d" % (ACC + i, ACC + i, ACC + 32 + i))
    vm.wait("res")
    o = ACC + 8
    e = ACC + 16
    for i in range(4):
        a("v_cvt_pk_bf16_f32 v%d, v%d, v%d" % (o + i, ACC + 2 * i, ACC + 2 * i + 1))
    for i in range(4):
        a("v_lshlrev_b32 v%d, 16, v%d" % (ACC + 2 * i, o + i))
        a("v_and_b32 v%d, 0xffff0000, v%d" % (ACC + 2 * i + 1, o + i))
        a("v_lshlrev_b32 v%d, 16, v%d" % (e + 2 * i, RES + i))
        a("v_and_b32 v%d, 0xffff0000, v%d" % (e + 2 * i + 1, RES + i))
    for i in range(8):
        a("v_add_f32 v%d, v%d, v%d" % (ACC + i, ACC + i, e + i))
    for i in range(4):
        a("v_cvt_pk_bf16_f32 v%d, v%d, v%d" % (o + i, ACC + 2 * i, ACC + 2 * i + 1))
    if final:
        a("s_cmp_eq_u32 s55, 0")
        a("s_cbranch_scc1 %s_notfinal" % name)
        a("buffer_store_dwordx2 %s, v7, s[16:19], 0 offen" % vr(o, 2))
        a("buffer_store_dwordx2 %s, v7, s[16:19], 0 offen offset:32" % vr(o + 2, 2))
        a("s_branch %s_fin" % name)
        a.label("%s_notfinal" % name)
    sc = "" if final else SC
    vm.issue("out", "buffer_store_dwordx4 %s, v5, s[8:11], s34 offen%s" % (vr(o, 4), sc))
    s = ACC + 24
    a("v_mov_b32 v%d, 0" % s)
    a("v_mov_b32 v%d, 0" % (s + 1))
    for i in range(4):
        a("v_dot2c_f32_bf16 v%d, v%d, v11" % (s, o + i))
        a("v_dot2c_f32_bf16 v%d, v%d, v%d" % (s + 1, o + i, o + i))
    butterfly(a, [s, s + 1], [s + 2, s + 3], "v_add_f32")
    vm.issue("out", "buffer_store_dwordx2 %s, v8, s[8:11], s35 offen%s" % (vr(s, 2), sc))
    if final:
        a.label("%s_fin" % name)


def publish(a, vm, tag, s_pub, uid):
    vm.wait(tag)
    stamp(a)
    a("s_barrier")
    a("s_cmp_lg_u32 s3, 0")
    a("s_cbranch_scc1 pub_skip_%s" % uid)
    a("v_mov_b32 v1, 0")
    a("v_mov_b32 v2, 1")
    a("s_mov_b64 s[58:59], exec")
    a("s_mov_b64 exec, 1")
    a("buffer_atomic_add v2, v1, s[8:11], s%d offen sc1" % s_pub)
    a("s_mov_b64 exec, s[58:59]")
    a("v_and_b32 v1, 63, v0")
    a.raw("pub_skip_%s:" % uid)
    a.hist = []
    a("s_nop 4")


def wait_flag(a, s_wait, count, uid):
    a("s_cmp_lg_u32 s3, 7")
    a("s_cbranch_scc1 sync_skip_%s" % uid)
    a("v_mov_b32 v1, 0")
    a("s_mov_b64 s[58:59], exec")
    a("s_mov_b64 exec, 1")
    a("s_mov_b32 s56, 0")
    a.raw("sync_poll_%s:" % uid)
    a("buffer_load_dword v2, v1, s[8:11], s%d offen sc1" % s_wait)
    a("s_waitcnt vmcnt(0)")
    a("v_readfirstlane_b32 s57, v2")
    a("s_cmp_ge_u32 s57, %d" % count)
    a("s_cbranch_scc1 sync_done_%s" % uid)
    a("s_sleep 1")
    a("s_add_u32 s56, s56, 1")
    a("s_cmp_lt_u32 s56, 0x8000")
    a("s_cbranch_scc1 sync_poll_%s" % uid)
    a.raw("sync_done_%s:" % uid)
    a("s_mov_b64 exec, s[58:59]")
    a("v_and_b32 v1, 63, v0")
    a.raw("sync_skip_%s:" % uid)
    a.hist = []
    a("s_nop 4")
    a("s_barrier")


def gen_kb(a):
    name = "kb"
    stubs(a, "kb", [{52: OFF_X0, 53: OFF_FLAG, 54: OFF_KV, 55: 0}, {52: OFF_X2, 53: OFF_FLAG + 8192, 54: OFF_KV + 131072, 55: 1}], "kb_body")
    vm = VM(a)
    a("s_cmp_ge_u32 s2, 224")
    a("s_cbranch_scc1 %s_done" % name)
    stamp(a)
    a("s_load_dwordx4 s[4:7], s[0:1], 64")
    a("s_load_dwordx2 s[36:37], s[0:1], 80")
    a("v_and_b32 v1, 63, v0")
    a("v_lshrrev_b32 v2, 6, v0")
    a("v_readfirstlane_b32 s3, v2")
    a("v_and_b32 v3, 15, v1")
    a("v_lshrrev_b32 v4, 4, v1")
    a("v_lshlrev_b32 v5, 4, v1")
    a("v_cmp_eq_u32 s[40:41], 3, v4")
    tile_map(a)
    a("s_waitcnt lgkmcnt(0)")
    srd(a, 8, 36, 0, WS_TOTAL)
    srd(a, 12, 6, 0, 256)
    srd(a, 16, 4, 0, SZ_X)
    a("s_mov_b32 s6, s36")
    a("s_mov_b32 s7, s37")
    ACC = 16
    RES = 12

    def HB(hh):
        return 80 + hh * 80

    for hh in range(2):
        hb = HB(hh)
        a("s_lshl_b32 s27, s3, 1")
        a("s_add_u32 s27, s27, %d" % hh)
        a("s_lshl_b32 s28, s27, 13")
        a("s_add_u32 s28, s28, s54")
        a("s_add_u32 s29, s28, 4096")
        for b in range(2):
            for dt in range(2):
                for hf in range(2):
                    vm.issue("kv%d" % hh, "buffer_load_dwordx4 %s, v5, s[8:11], s%d offen offset:%d" % (vr(hb + (b * 2 + dt) * 8 + hf * 4, 4), 28 + b, (hf * 2 + dt) * 1024))
        a("s_lshl_b32 s30, s22, 6")
        a("s_add_u32 s30, s30, s27")
        a("s_lshl_b32 s30, s30, 11")
        a("s_add_u32 s30, s30, 0x%x" % OFF_PHIQ)
        for rt in range(4):
            a("s_add_u32 s31, s30, %d" % (rt * 32768))
            for b in range(2):
                vm.issue("pq%d_%d" % (hh, rt), "buffer_load_dwordx4 %s, v5, s[8:11], s31 offen offset:%d" % (vr(hb + 32 + (rt * 2 + b) * 4, 4), b * 1024))
        a("s_mul_i32 s30, s27, 28")
        a("s_lshl_b32 s31, s23, 2")
        a("s_add_u32 s30, s30, s31")
        a("s_lshl_b32 s30, s30, 10")
        a("s_add_u32 s30, s30, 0x%x" % OFF_WO)
        for ct in range(4):
            vm.issue("wo%d" % hh, "buffer_load_dwordx4 %s, v5, s[8:11], s30 offen offset:%d" % (vr(hb + 64 + ct * 4, 4), ct * 1024))
    a("s_lshl_b32 s30, s26, 10")
    a("s_add_u32 s30, s30, s52")
    vm.issue("res", "buffer_load_dwordx4 v[12:15], v5, s[8:11], s30 offen")
    DN = 252
    for hh in range(2):
        hb = HB(hh)
        vm.wait("kv%d" % hh)
        for i in range(16):
            a("v_cvt_pk_bf16_f32 v%d, v%d, v%d" % (hb + i, hb + 2 * i, hb + 2 * i + 1))

        def num_mfma(rt):
            nb = hb + 16 + (rt & 1) * 8
            vm.wait("pq%d_%d" % (hh, rt))
            for dt in range(2):
                for b in range(2):
                    d = vr(nb + dt * 4, 4)
                    a("%s %s, %s, %s, %s" % (MF, d, vr(hb + (b * 2 + dt) * 4, 4), vr(hb + 32 + (rt * 2 + b) * 4, 4), "0" if b == 0 else d))

        num_mfma(0)
        for rt in range(4):
            if rt < 3:
                num_mfma(rt + 1)
            nb = hb + 16 + (rt & 1) * 8
            a("v_cndmask_b32 v%d, 0, v%d, s[40:41]" % (DN, nb + 4))
            butterfly(a, [DN], [DN + 1], "v_add_f32")
            a("v_add_f32 v%d, 0x358637bd, v%d" % (DN, DN))
            a("v_rcp_f32 v%d, v%d" % (DN, DN))
            for i in range(8):
                a("v_mul_f32 v%d, v%d, v%d" % (nb + i, nb + i, DN))
            of = 240 + (rt & 1) * 4
            for i in range(4):
                a("v_cvt_pk_bf16_f32 v%d, v%d, v%d" % (of + i, nb + 2 * i, nb + 2 * i + 1))
            if rt == 0:
                vm.wait("wo%d" % hh)
            for ct in range(4):
                d = vr(ACC + (rt * 4 + ct) * 4, 4)
                a("%s %s, %s, %s, %s" % (MF, d, vr(hb + 64 + ct * 4, 4), vr(of, 4), "0" if hh == 0 else d))
    stamp(a)
    reduce_store(a, vm, ACC, RES, "kbA", OFF_X1, OFF_ST1, False)
    a("s_lshr_b32 s50, s22, 1")
    a("s_lshl_b32 s50, s50, 8")
    a("s_add_u32 s50, s50, s53")
    a("s_add_u32 s51, s50, 4096")
    publish(a, vm, "out", 50, "a")
    LDS_ST = 112 * 1024
    LDS_HX = 116 * 1024
    a("s_and_b32 s22, s20, 3")
    a("s_lshl_b32 s22, s22, 2")
    a("s_and_b32 s23, s21, 3")
    a("s_add_u32 s22, s22, s23")
    a("s_lshr_b32 s23, s20, 2")
    a("s_mul_i32 s23, s23, 7")
    a("s_lshr_b32 s24, s21, 2")
    a("s_add_u32 s23, s23, s24")
    a("s_lshl_b32 s23, s23, 3")
    a("s_add_u32 s23, s23, s3")
    a("s_lshl_b32 s24, s22, 3")
    a("s_add_u32 s24, s24, s3")
    a("s_mul_i32 s26, s3, %d" % (14 * 1024))
    a("s_mul_i32 s27, s24, %d" % (14 * 1024))
    a("s_add_u32 s27, s27, 0x%x" % OFF_X1)
    W = 136
    ACC = 8
    XB = 72
    CS = 248
    a("s_mul_i32 s29, s23, %d" % (28 * 1024))
    a("s_add_u32 s29, s29, 0x%x" % OFF_WGU)
    for c in range(7):
        a("s_add_u32 s%d, s29, %d" % (42 + c, c * 4096))
    def wload(ks):
        for mat in range(2):
            vm.issue("w%d" % ks, "buffer_load_dwordx4 %s, v5, s[8:11], s%d offen offset:%d" % (vr(W + (ks * 2 + mat) * 4, 4), 42 + ks // 2, ((ks & 1) * 2 + mat) * 1024))

    NPRE = 6
    for ks in range(NPRE):
        wload(ks)
    a("s_lshl_b32 s31, s23, 11")
    a("s_add_u32 s31, s31, 0x%x" % OFF_CGU)
    vm.issue("cs", "buffer_load_dwordx4 v[248:251], v5, s[8:11], s31 offen")
    vm.issue("cs", "buffer_load_dwordx4 v[252:255], v5, s[8:11], s31 offen offset:1024")
    a("s_lshr_b32 s38, s21, 2")
    a("s_mul_i32 s28, s38, 224")
    a("s_mul_i32 s39, s3, 7")
    a("s_add_u32 s28, s28, s39")
    a("s_lshl_b32 s28, s28, 10")
    a("s_add_u32 s28, s28, 0x%x" % OFF_WD)
    for c in range(4):
        a("s_add_u32 s%d, s28, %d" % (84 + c, c * 56 * 1024))
        a("s_add_u32 s%d, s28, %d" % (88 + c, c * 56 * 1024 + 4096))
    WD = 136

    def wdload(j):
        i, c = j // 4, j % 4
        vm.issue("wd", "buffer_load_dwordx4 %s, v5, s[8:11], s%d offen offset:%d" % (vr(WD + j * 4, 4), (84 if i < 4 else 88) + c, (i % 4) * 1024))

    a("s_lshl_b32 s49, s22, 8")
    a("s_add_u32 s49, s49, s53")
    stamp(a)
    wait_flag(a, 49, 14, "a")
    stamp(a)
    stats_addr(a, 6, 7, 3, 4, 2)

    def xdma(lo, hi, tag):
        for c0 in range(lo, hi, 4):
            n = min(4, hi - c0)
            a("s_add_u32 s28, s26, %d" % (c0 * 1024))
            a("s_mov_b32 m0, s28")
            a("s_add_u32 s29, s27, %d" % (c0 * 1024))
            for i in range(n):
                vm.issue(tag, "buffer_load_dwordx4 v5, s[8:11], s29 offen offset:%d%s lds" % (i * 1024, SC))

    S = ACC
    xdma(0, 7, "dmaA")
    a("s_mul_i32 s30, s24, %d" % (14 * 128))
    a("s_add_u32 s30, s30, 0x%x" % OFF_ST1)
    for i in range(4):
        vm.issue("st", "buffer_load_dwordx2 %s, v%d, s[8:11], s30 offen offset:%d%s" % (vr(S + 2 * i, 2), 6 if i < 3 else 7, i * 512, SC))
    xdma(7, 14, "dmaB")
    a("v_add_u32 v6, 57344, v5")
    vm.wait("st")
    stats_finish(a, S, S + 10, S + 11, S + 8, S + 9)
    a("s_lshl_b32 s33, s3, 7")
    a("s_add_u32 s33, s33, %d" % LDS_ST)
    a("v_lshlrev_b32 v2, 3, v3")
    a("v_add_u32 v2, s33, v2")
    a("ds_write_b64 v2, %s" % vr(S + 10, 2))
    a("s_waitcnt lgkmcnt(0)")
    a("s_barrier")
    stamp(a)

    def xfrag(dst, rt, ks):
        off = (rt * 14 + ks) * 1024
        if off < 57344:
            a("ds_read_b128 %s, v5 offset:%d" % (vr(dst, 4), off))
        else:
            a("ds_read_b128 %s, v6 offset:%d" % (vr(dst, 4), off - 57344))

    for rt in range(8):
        xfrag(XB + rt * 4, rt, 0)
    for ks in range(14):
        cur = XB + (ks & 1) * 32
        nxt = XB + ((ks + 1) & 1) * 32
        if ks < 13 and ks != 6:
            for rt in range(8):
                xfrag(nxt + rt * 4, rt, ks + 1)
            vm.wait("w%d" % ks, "lgkmcnt(8)")
        else:
            vm.wait("w%d" % ks, "lgkmcnt(0)")
        q = []
        if ks + NPRE < 14:
            q.append(lambda ks=ks: wload(ks + NPRE))
        if ks >= 1:
            q.append(lambda ks=ks: wdload(2 * ks - 2))
            q.append(lambda ks=ks: wdload(2 * ks - 1))
        for rt in range(8):
            for mat in range(2):
                d = vr(ACC + (rt * 2 + mat) * 4, 4)
                a("%s %s, %s, %s, %s" % (MF, d, vr(W + (ks * 2 + mat) * 4, 4), vr(cur + rt * 4, 4), "0" if ks == 0 else d))
            if q and rt % 2 == 1:
                q.pop(0)()
        assert not q
        if ks == 6:
            vm.wait("dmaB")
            a("s_barrier")
            for rt in range(8):
                xfrag(nxt + rt * 4, rt, ks + 1)
    stamp(a)
    a("v_lshlrev_b32 v2, 3, v3")
    a("v_add_u32 v2, %d, v2" % LDS_ST)
    for rt in range(8):
        a("ds_read_b64 %s, v2 offset:%d" % (vr(XB + 2 * rt, 2), rt * 128))
    a("s_lshl_b32 s33, s22, 1")
    a("s_and_b32 s34, s3, 1")
    a("s_add_u32 s33, s33, s34")
    a("s_mul_i32 s33, s33, %d" % (4 * 56))
    a("s_lshr_b32 s34, s23, 1")
    a("s_add_u32 s33, s33, s34")
    a("s_lshl_b32 s33, s33, 10")
    a("s_add_u32 s33, s33, 0x%x" % OFF_H)
    a("s_lshr_b32 s34, s3, 1")
    a("s_lshl_b32 s34, s34, 13")
    a("s_add_u32 s34, s34, %d" % LDS_HX)
    a("s_and_b32 s35, s3, 1")
    a("s_lshl_b32 s38, s35, 3")
    a("s_add_u32 s38, s38, s34")
    a("v_add_u32 v2, s38, v5")
    a("s_lshl_b32 s38, s35, 12")
    a("s_add_u32 s38, s38, s34")
    a("v_add_u32 v6, s38, v5")
    a("v_mov_b32 v7, 0xbfb8aa3b")
    wdload(26)
    wdload(27)
    a("s_waitcnt lgkmcnt(0)")
    T = XB + 16
    for rt in range(8):
        mb, ri = XB + 2 * rt, XB + 2 * rt + 1
        g = ACC + rt * 8
        u = g + 4
        t = T + (rt & 1) * 8
        a("v_mul_f32 v%d, v%d, v7" % (t, ri))
        for r in range(4):
            a("v_fma_f32 v%d, -v%d, v%d, v%d" % (g + r, mb, CS + r, g + r))
        for r in range(4):
            a("v_fma_f32 v%d, -v%d, v%d, v%d" % (u + r, mb, CS + 4 + r, u + r))
        for r in range(4):
            a("v_mul_f32 v%d, v%d, v%d" % (g + r, g + r, t))
        for r in range(4):
            a("v_exp_f32 v%d, v%d" % (g + r, g + r))
        for r in range(4):
            a("v_mul_f32 v%d, v%d, v%d" % (u + r, u + r, ri))
        for r in range(4):
            a("v_add_f32 v%d, 1.0, v%d" % (g + r, g + r))
        for r in range(4):
            a("v_rcp_f32 v%d, v%d" % (g + r, g + r))
        for r in range(4):
            a("v_mul_f32 v%d, v%d, v%d" % (g + r, g + r, u + r))
        a("v_cvt_pk_bf16_f32 v%d, v%d, v%d" % (t + 4, g, g + 1))
        a("v_cvt_pk_bf16_f32 v%d, v%d, v%d" % (t + 5, g + 2, g + 3))
        a("ds_write_b64 v2, %s offset:%d" % (vr(t + 4, 2), rt * 1024))
    a("s_waitcnt lgkmcnt(0)")
    a("s_barrier")
    for i in range(4):
        a("ds_read_b128 %s, v6 offset:%d" % (vr(ACC + 4 * i, 4), i * 1024))
    for i in range(4):
        a("s_waitcnt lgkmcnt(%d)" % (3 - i))
        a("s_add_u32 s34, s33, %d" % (i * 56 * 1024))
        vm.issue("hout", "buffer_store_dwordx4 %s, v5, s[8:11], s34 offen%s" % (vr(ACC + 4 * i, 4), SC))
    a("s_add_u32 s49, s49, 4096")
    stamp(a)
    publish(a, vm, "hout", 49, "b")
    wait_flag(a, 51, 14, "b")
    stamp(a)
    tile_map(a)
    a("s_mul_i32 s27, s3, 7")
    a("s_mul_i32 s29, s22, 224")
    a("s_add_u32 s29, s29, s27")
    a("s_lshl_b32 s29, s29, 10")
    a("s_add_u32 s29, s29, 0x%x" % OFF_H)
    for c in range(4):
        a("s_add_u32 s%d, s29, %d" % (42 + c, c * 56 * 1024))
        a("s_add_u32 s%d, s29, %d" % (46 + c, c * 56 * 1024 + 4096)) if c < 3 else None
    a("s_add_u32 s39, s29, %d" % (3 * 56 * 1024 + 4096))
    ACC = 16
    HBUF = 80
    NST = 3

    def hissue(i):
        st = HBUF + (i % NST) * 16
        for c in range(4):
            sH = (42 + c) if i < 4 else ((46 + c) if c < 3 else 39)
            vm.issue("h%d" % i, "buffer_load_dwordx4 %s, v5, s[8:11], s%d offen offset:%d%s" % (vr(st + c * 4, 4), sH, (i % 4) * 1024, SC))

    for i in range(NST):
        hissue(i)
    a("s_lshl_b32 s30, s26, 10")
    a("s_add_u32 s30, s30, 0x%x" % OFF_X1)
    vm.issue("res", "buffer_load_dwordx4 v[12:15], v5, s[8:11], s30 offen%s" % SC)
    for i in range(7):
        vm.wait("h%d" % i)
        st = HBUF + (i % NST) * 16
        for rt in range(4):
            for ct in range(4):
                d = vr(ACC + (rt * 4 + ct) * 4, 4)
                a("%s %s, %s, %s, %s" % (MF, d, vr(WD + (i * 4 + ct) * 4, 4), vr(st + rt * 4, 4), "0" if i == 0 else d))
        if i + NST < 7:
            hissue(i + NST)
    stamp(a)
    reduce_store(a, vm, ACC, RES, "kbC", OFF_X2, OFF_ST2, True)
    stamp(a)
    stamp_flush(a, 2, 6)
    a.label("%s_done" % name)
    a("s_endpgm")
    for layer in range(2):
        kdefs["kbl%d_kernel" % layer] = (256, 96, 0)


def emit_file(a, dst):
    hdr = open("interleave_layers__linear_kernel_hedgehog__glu_gated_glu__prompt.s.ref").read().split("\n")
    head = [l for l in hdr if l.startswith(";") and "@launch" not in l and "Override launch" not in l and "grid=ceil" not in l]
    out = head[:]
    for (name, grid, block, lds, vg, sg) in kernels:
        kdefs[name] = (vg, sg, 0)
        launches.append((name, grid, block, lds))
    for (name, grid, block, lds) in launches:
        out.append("; @launch kernel=%s grid=(%d,1,1) block=(%d,1,1) lds=%d" % (name, grid, block, lds))
    out.append('.amdgcn_target "amdgcn-amd-amdhsa--gfx950"')
    out.append(".text")
    out.append(a.text())
    out.append('.section .rodata,"a"')
    for name, (vg, sg, ag) in kdefs.items():
        acc = (vg + 3) // 4 * 4
        out.append(".p2align 6")
        out.append(".amdhsa_kernel %s" % name)
        out.append("  .amdhsa_next_free_vgpr %d" % (acc + ag if ag else vg))
        out.append("  .amdhsa_next_free_sgpr %d" % (100 if STAMP else sg))
        out.append("  .amdhsa_accum_offset %d" % acc)
        out.append("  .amdhsa_group_segment_fixed_size 0")
        out.append("  .amdhsa_kernarg_size 88")
        out.append("  .amdhsa_user_sgpr_count 2")
        out.append("  .amdhsa_user_sgpr_kernarg_segment_ptr 1")
        out.append("  .amdhsa_system_sgpr_workgroup_id_x 1")
        out.append("  .amdhsa_float_denorm_mode_32 3")
        out.append(".end_amdhsa_kernel")
    open(dst, "w").write("\n".join(out) + "\n")
    print("wrote", dst, "ws total", WS_TOTAL)


def main():
    a = Asm()
    gen_prep(a)
    gen_k1(a)
    gen_kb(a)
    a.raw("code_end:")
    launches.append(("prep_kernel", NPREP, 256, 32768))
    for layer in range(2):
        launches.append(("k1l%d_kernel" % layer, 256, 512, 86016 + 65536))
        launches.append(("kbl%d_kernel" % layer, 224, 512, 148 * 1024))
    dst = sys.argv[1] if len(sys.argv) > 1 else "interleave_layers__linear_kernel_hedgehog__glu_gated_glu__prompt.s"
    emit_file(a, dst)


if __name__ == "__main__":
    main()
```

```python
import sys
import os
from asmlib import Asm, vr, sr

OFF_WQKV = 0
SZ_WQKV = 16 * 84 * 1024
OFF_CQKV = OFF_WQKV + SZ_WQKV
SZ_CQKV = 16 * 6 * 1024
OFF_WPHI = OFF_CQKV + SZ_CQKV
SZ_WPHI = 16 * 2 * 1024
OFF_WO = OFF_WPHI + SZ_WPHI
SZ_WO = 16 * 28 * 1024
OFF_WGU = OFF_WO + SZ_WO
SZ_WGU = 112 * 14 * 2 * 1024
OFF_CGU = OFF_WGU + SZ_WGU
SZ_CGU = 112 * 2 * 1024
OFF_WD = OFF_CGU + SZ_CGU
SZ_WD = 28 * 56 * 1024
OFF_KV = OFF_WD + SZ_WD
SZ_KV = 2 * 16 * 8192
OFF_PHIQ = OFF_KV + SZ_KV
SZ_PHIQ = 128 * 16 * 2 * 1024
SZ_X = 2048 * 448 * 2
OFF_X0 = OFF_PHIQ + SZ_PHIQ
OFF_X1 = OFF_X0 + SZ_X
OFF_X2 = OFF_X1 + SZ_X
SZ_ST = 128 * 14 * 128
OFF_ST0 = OFF_X2 + SZ_X
OFF_ST1 = OFF_ST0 + SZ_ST
OFF_ST2 = OFF_ST1 + SZ_ST
OFF_H = OFF_ST2 + SZ_ST
SZ_H = 128 * 56 * 1024
OFF_FLAG = OFF_H + SZ_H
SZ_FLAG = 32768
WS_TOTAL = OFF_FLAG + SZ_FLAG

OOB = 0x40000000
LOG2E = 0x3FB8AA3B
ONES_BF = 0x3F803F80
MF = "v_mfma_f32_16x16x32_bf16"

kernels = []
kdefs = {}
launches = []
STAMP = int(os.environ.get("STAMP", "0"))
STF = os.environ.get("STF", "")
OFF_STAMP = 32 << 20
_nst = [0]


def stamp(a):
    if not STAMP:
        return
    i = _nst[0]
    a("%s s[%d:%d]" % ("s_memrealtime" if STAMP == 2 else "s_memtime", 60 + 2 * i, 61 + 2 * i))
    _nst[0] += 1


def stamp_flush(a, kidx, wsp):
    if not STAMP:
        return
    n = _nst[0]
    _nst[0] = 0
    a("s_waitcnt vmcnt(0) lgkmcnt(0)")
    if STAMP == 2:
        a("s_cmp_lg_u32 s3, 0")
        a("s_cbranch_scc1 st_skip_%d" % kidx)
        srd(a, 92, wsp, OFF_STAMP + kidx * 65536, 65536)
        a("s_lshl_b32 s96, s2, 7")
    else:
        a("s_cmp_ge_u32 s2, 8")
        a("s_cbranch_scc1 st_skip_%d" % kidx)
        srd(a, 92, wsp, OFF_STAMP + kidx * 16384, 16384)
        a("s_lshl_b32 s96, s2, 3")
        a("s_add_u32 s96, s96, s3")
        a("s_lshl_b32 s96, s96, 7")
    a("v_mov_b32 v1, 0")
    for i in range(n):
        a("v_mov_b32 v2, s%d" % (60 + 2 * i))
        a("buffer_store_dword v2, v1, s[92:95], s96 offen offset:%d" % (4 * i))
    a("s_waitcnt vmcnt(0)")
    a.label("st_skip_%d" % kidx)


class VM:
    def __init__(self, a):
        self.a = a
        self.q = []

    def issue(self, tag, text):
        self.a(text)
        self.q.append(tag)

    def count_after(self, tag):
        idx = max(i for i, t in enumerate(self.q) if t == tag)
        return len(self.q) - 1 - idx

    def wait(self, tag, extra=""):
        n = min(self.count_after(tag), 63)
        self.a(("s_waitcnt vmcnt(%d) " % n + extra).strip())


class Rec:
    def __init__(self):
        self.items = []

    def __call__(self, text):
        self.items.append(("i", text))

    def issue(self, tag, text):
        self.items.append(("v", tag, text))

    def wait(self, tag, extra=""):
        self.items.append(("w", tag, extra))


def play(a, vm, it):
    if it[0] == "i":
        a(it[1])
    elif it[0] == "v":
        vm.issue(it[1], it[2])
    else:
        vm.wait(it[1], it[2])


def interleave(a, vm, main, side, per):
    acc = 0.0
    j = 0
    for it in main.items:
        play(a, vm, it)
        if it[0] == "i" and it[1].startswith("v_mfma"):
            acc += per
            while acc >= 1.0 and j < len(side.items):
                play(a, vm, side.items[j])
                j += 1
                acc -= 1.0
    while j < len(side.items):
        play(a, vm, side.items[j])
        j += 1


def kbegin(a, name):
    a.raw(".globl %s" % name)
    a.raw(".p2align 8")
    a.raw(".type %s,@function" % name)
    a.raw(name + ":")
    a.hist = []


def srd(a, d, p, off, size):
    if off:
        a("s_add_u32 s%d, s%d, 0x%x" % (d, p, off))
        a("s_addc_u32 s%d, s%d, 0" % (d + 1, p + 1))
        a("s_and_b32 s%d, s%d, 0xffff" % (d + 1, d + 1))
    else:
        a("s_mov_b32 s%d, s%d" % (d, p))
        a("s_and_b32 s%d, s%d, 0xffff" % (d + 1, p + 1))
    a("s_mov_b32 s%d, 0x%x" % (d + 2, size))
    a("s_mov_b32 s%d, 0x20000" % (d + 3))


def kmapD_slot(j):
    return j if j < 4 else 12 + j


def butterfly(a, regs, tmp, op):
    for swap in ("v_permlane16_swap_b32", "v_permlane32_swap_b32"):
        for r, t in zip(regs, tmp):
            a("v_mov_b32 v%d, v%d" % (t, r))
        for r, t in zip(regs, tmp):
            a("%s v%d, v%d" % (swap, r, t))
        for r, t in zip(regs, tmp):
            a("%s v%d, v%d, v%d" % (op, r, r, t))


def ln_finish(a, vsum, vsq, vmb, vrinv, t0, t1):
    a("v_mul_f32 v%d, 0x3b124925, v%d" % (vsum, vsum))
    a("v_mul_f32 v%d, 0x3b124925, v%d" % (vsq, vsq))
    a("v_fma_f32 v%d, -v%d, v%d, v%d" % (vsq, vsum, vsum, vsq))
    a("v_max_f32 v%d, 0, v%d" % (vsq, vsq))
    a("v_cvt_pk_bf16_f32 v%d, v%d, v%d" % (t0, vsum, vsq))
    a("v_lshlrev_b32 v%d, 16, v%d" % (vmb, t0))
    a("v_and_b32 v%d, 0xffff0000, v%d" % (t1, t0))
    a("v_add_f32 v%d, 0x3727c5ac, v%d" % (t1, t1))
    a("v_cvt_pk_bf16_f32 v%d, v%d, v%d" % (t0, t1, t1))
    a("v_lshlrev_b32 v%d, 16, v%d" % (t1, t0))
    a("v_sqrt_f32 v%d, v%d" % (t1, t1))
    a("v_cvt_pk_bf16_f32 v%d, v%d, v%d" % (t0, t1, t1))
    a("v_lshlrev_b32 v%d, 16, v%d" % (t1, t0))
    a("v_rcp_f32 v%d, v%d" % (vrinv, t1))


def stats_addr(a, vst, vst3, vl15, vg, vtmp):
    a("v_lshlrev_b32 v%d, 7, v%d" % (vst, vg))
    a("v_lshlrev_b32 v%d, 3, v%d" % (vtmp, vl15))
    a("v_add_u32 v%d, v%d, v%d" % (vst, vst, vtmp))
    a("v_mov_b32 v%d, 0x%x" % (vtmp, OOB))
    a("v_cmp_gt_u32 vcc, 2, v%d" % vg)
    a("v_cndmask_b32 v%d, v%d, v%d, vcc" % (vst3, vtmp, vst))


def stats_load(vm, tag, dst, vst, vst3, s_srd, s_off):
    for i in range(4):
        vm.issue(tag, "buffer_load_dwordx2 %s, v%d, %s, s%d offen offset:%d sc1" % (vr(dst + 2 * i, 2), vst if i < 3 else vst3, sr(s_srd, 4), s_off, i * 512))


def stats_finish(a, src, vmb, vri, t0, t1):
    a("v_add_f32 v%d, v%d, v%d" % (src, src, src + 2))
    a("v_add_f32 v%d, v%d, v%d" % (src + 1, src + 1, src + 3))
    a("v_add_f32 v%d, v%d, v%d" % (src + 4, src + 4, src + 6))
    a("v_add_f32 v%d, v%d, v%d" % (src + 5, src + 5, src + 7))
    a("v_add_f32 v%d, v%d, v%d" % (src, src, src + 4))
    a("v_add_f32 v%d, v%d, v%d" % (src + 1, src + 1, src + 5))
    butterfly(a, [src, src + 1], [t0, t1], "v_add_f32")
    ln_finish(a, src, src + 1, vmb, vri, t0, t1)


def softmax_pair(a, P, T, outp, outm, sg3, vL):
    E = T[0:8]
    G = T[8:16]
    mx, mn, t0, t1 = T[16], T[17], T[18], T[19]
    a("v_max3_f32 v%d, v%d, v%d, v%d" % (t0, P[4], P[5], P[6]))
    a("v_min3_f32 v%d, v%d, v%d, v%d" % (t1, P[4], P[5], P[6]))
    a("v_max_f32 v%d, v%d, v%d" % (t0, t0, P[7]))
    a("v_min_f32 v%d, v%d, v%d" % (t1, t1, P[7]))
    a("v_cndmask_b32 v%d, v%d, v%d, %s" % (t0, t0, P[0], sg3))
    a("v_cndmask_b32 v%d, v%d, v%d, %s" % (t1, t1, P[0], sg3))
    a("v_max3_f32 v%d, v%d, v%d, v%d" % (mx, P[0], P[1], P[2]))
    a("v_min3_f32 v%d, v%d, v%d, v%d" % (mn, P[0], P[1], P[2]))
    a("v_max3_f32 v%d, v%d, v%d, v%d" % (mx, mx, P[3], t0))
    a("v_min3_f32 v%d, v%d, v%d, v%d" % (mn, mn, P[3], t1))
    for swap in ("v_permlane16_swap_b32", "v_permlane32_swap_b32"):
        a("v_mov_b32 v%d, v%d" % (t0, mx))
        a("v_mov_b32 v%d, v%d" % (t1, mn))
        a("%s v%d, v%d" % (swap, mx, t0))
        a("%s v%d, v%d" % (swap, mn, t1))
        a("v_max_f32 v%d, v%d, v%d" % (mx, mx, t0))
        a("v_min_f32 v%d, v%d, v%d" % (mn, mn, t1))
    a("v_mul_f32 v%d, v%d, v%d" % (mx, mx, vL))
    a("v_mul_f32 v%d, v%d, v%d" % (mn, mn, vL))
    for i in range(8):
        a("v_fma_f32 v%d, v%d, v%d, -v%d" % (E[i], P[i], vL, mx))
        a("v_fma_f32 v%d, -v%d, v%d, v%d" % (G[i], P[i], vL, mn))
    for i in range(8):
        a("v_exp_f32 v%d, v%d" % (E[i], E[i]))
        a("v_exp_f32 v%d, v%d" % (G[i], G[i]))
    for i in range(4, 8):
        a("v_cndmask_b32 v%d, v%d, 0, %s" % (E[i], E[i], sg3))
        a("v_cndmask_b32 v%d, v%d, 0, %s" % (G[i], G[i], sg3))
    sp, sm = mx, mn
    a("v_add_f32 v%d, v%d, v%d" % (sp, E[0], E[1]))
    a("v_add_f32 v%d, v%d, v%d" % (sm, G[0], G[1]))
    for i in range(2, 8):
        a("v_add_f32 v%d, v%d, v%d" % (sp, sp, E[i]))
        a("v_add_f32 v%d, v%d, v%d" % (sm, sm, G[i]))
    butterfly(a, [sp, sm], [t0, t1], "v_add_f32")
    a("v_rcp_f32 v%d, v%d" % (sp, sp))
    a("v_rcp_f32 v%d, v%d" % (sm, sm))
    for i in range(8):
        a("v_mul_f32 v%d, v%d, v%d" % (E[i], E[i], sp))
        a("v_mul_f32 v%d, v%d, v%d" % (G[i], G[i], sm))
    for i in range(4):
        a("v_cvt_pk_bf16_f32 v%d, v%d, v%d" % (outp + i, E[2 * i], E[2 * i + 1]))
        a("v_cvt_pk_bf16_f32 v%d, v%d, v%d" % (outm + i, G[2 * i], G[2 * i + 1]))


NPREP = 267


def gen_prep(a):
    name = "prep_kernel"
    kbegin(a, name)
    a("s_cmp_ge_u32 s2, %d" % NPREP)
    a("s_cbranch_scc1 prep_done")
    stamp(a)
    a("s_load_dwordx16 s[4:19], s[0:1], 0")
    a("s_load_dwordx2 s[20:21], s[0:1], 80")
    a("v_and_b32 v1, 63, v0")
    a("v_lshrrev_b32 v2, 6, v0")
    a("v_readfirstlane_b32 s3, v2")
    a("v_and_b32 v3, 15, v1")
    a("v_lshrrev_b32 v4, 4, v1")
    a("v_lshlrev_b32 v5, 4, v1")
    a("v_mov_b32 v6, 0x%x" % OOB)
    for i in range(4):
        a("v_mov_b32 v%d, 0x%x" % (8 + i, ONES_BF))
    a("v_cmp_eq_u32 s[40:41], 3, v4")
    a("s_and_b32 s46, s3, 1")
    a("s_lshr_b32 s47, s3, 1")
    a("v_lshrrev_b32 v7, 2, v3")
    a("v_lshl_add_u32 v7, v4, 2, v7")
    a("v_lshlrev_b32 v7, 6, v7")
    a("v_and_b32 v12, 3, v3")
    a("v_lshl_add_u32 v7, v12, 3, v7")
    a("s_lshl_b32 s48, s46, 5")
    a("v_add_u32 v7, s48, v7")
    a("v_lshrrev_b32 v13, 2, v1")
    a("v_and_b32 v14, 3, v1")
    a("v_lshlrev_b32 v14, 4, v14")
    a("s_waitcnt lgkmcnt(0)")
    srd(a, 24, 20, 0, WS_TOTAL)
    a("v_lshlrev_b32 v15, 19, v1")
    a("s_lshl_b32 s58, s3, 17")
    a("buffer_load_dword v164, v15, s[24:27], s58 offen")
    a("s_cmp_lt_u32 s2, 112")
    a("s_cbranch_scc1 prep_wgu")
    a("s_cmp_lt_u32 s2, 160")
    a("s_cbranch_scc1 prep_wqkv")
    a("s_cmp_lt_u32 s2, 216")
    a("s_cbranch_scc1 prep_wd")
    a("s_cmp_lt_u32 s2, 230")
    a("s_cbranch_scc1 prep_wo")
    a("s_cmp_lt_u32 s2, 262")
    a("s_cbranch_scc1 prep_x")
    a("s_cmp_lt_u32 s2, 263")
    a("s_cbranch_scc1 prep_wphi")
    a("s_branch prep_zero")

    FR = 32
    CSL = 29696

    def stage(RS):
        a("v_mul_u32_u24 v16, %d, v13" % RS)
        a("v_add_u32 v16, v16, v14")
        a("s_mul_i32 s36, s3, %d" % (7 * 16 * RS))
        a("s_add_u32 s36, s36, s35")
        a("s_mul_i32 s37, s3, %d" % (7 * 1024))
        for i in range(7):
            a("s_mov_b32 m0, s37")
            a("buffer_load_dwordx4 v16, s[28:31], s36 offen lds")
            if i < 6:
                a("s_add_u32 s36, s36, %d" % (16 * RS))
                a("s_add_u32 s37, s37, 1024")
        a("s_waitcnt vmcnt(0)")
        if STAMP:
            a("%s s[62:63]" % ("s_memrealtime" if STAMP == 2 else "s_memtime"))
        a("s_barrier")

    def trfrags(n, step, half_off):
        a("s_mul_i32 s36, s47, %d" % half_off)
        a("v_add_u32 v17, s36, v7")
        for j in range(n):
            a("ds_read_b64_tr_b16 %s, v17 offset:%d" % (vr(FR + 4 * j, 2), j * step))
            a("ds_read_b64_tr_b16 %s, v17 offset:%d" % (vr(FR + 4 * j + 2, 2), j * step + 1024))
        a("s_waitcnt lgkmcnt(0)")
        if STAMP:
            a("%s s[64:65]" % ("s_memrealtime" if STAMP == 2 else "s_memtime"))

    def store_frags(n, s_dst, stride):
        for j in range(n):
            a("s_add_u32 s37, s%d, 0x%x" % (s_dst, j * stride))
            a("buffer_store_dwordx4 %s, v5, s[24:27], s37 offen" % vr(FR + 4 * j, 4))
        if STAMP:
            a("%s s[66:67]" % ("s_memrealtime" if STAMP == 2 else "s_memtime"))

    def colsum(s_cdst, tag):
        for j in range(7):
            a("%s v[16:19], %s, v[8:11], %s" % (MF, vr(FR + 4 * j, 4), "0" if j == 0 else "v[16:19]"))
        a("s_lshl_b32 s36, s46, 10")
        a("s_add_u32 s36, s36, %d" % CSL)
        a("v_add_u32 v20, s36, v5")
        a("s_cmp_eq_u32 s47, 0")
        a("s_cbranch_scc1 prep_cs0_%s" % tag)
        a("ds_write_b128 v20, v[16:19]")
        a("s_waitcnt lgkmcnt(0)")
        a("s_barrier")
        a("s_branch prep_done")
        a.label("prep_cs0_%s" % tag)
        a("s_barrier")
        a("ds_read_b128 v[20:23], v20")
        a("s_waitcnt lgkmcnt(0)")
        for i in range(4):
            a("v_add_f32 v%d, v%d, v%d" % (16 + i, 16 + i, 20 + i))
        a("buffer_store_dwordx4 v[16:19], v5, s[24:27], s%d offen" % s_cdst)
        a("s_branch prep_done")

    a.label("prep_wgu")
    a("s_lshr_b32 s32, s2, 4")
    a("s_lshl_b32 s32, s32, 3")
    a("s_and_b32 s33, s2, 7")
    a("s_add_u32 s32, s32, s33")
    a("s_and_b32 s34, s32, 1")
    a("s_lshr_b32 s32, s32, 1")
    a("s_lshl_b32 s32, s32, 1")
    a("s_bfe_u32 s33, s2, 0x10003")
    a("s_add_u32 s32, s32, s33")
    a("s_cmp_eq_u32 s34, 0")
    a("s_cselect_b32 s44, s14, s16")
    a("s_cselect_b32 s45, s15, s17")
    srd(a, 28, 44, 0, 448 * 1792 * 2)
    a("s_lshl_b32 s35, s32, 6")
    stage(3584)
    trfrags(7, 2048, 7 * 2048)
    a("s_lshl_b32 s33, s32, 1")
    a("s_add_u32 s33, s33, s46")
    a("s_mul_i32 s39, s33, 14")
    a("s_mul_i32 s38, s47, 7")
    a("s_add_u32 s39, s39, s38")
    a("s_lshl_b32 s39, s39, 1")
    a("s_add_u32 s39, s39, s34")
    a("s_lshl_b32 s39, s39, 10")
    a("s_add_u32 s39, s39, 0x%x" % OFF_WGU)
    store_frags(7, 39, 2048)
    a("s_lshl_b32 s42, s33, 1")
    a("s_add_u32 s42, s42, s34")
    a("s_lshl_b32 s42, s42, 10")
    a("s_add_u32 s42, s42, 0x%x" % OFF_CGU)
    colsum(42, "gu")

    a.label("prep_wqkv")
    srd(a, 28, 6, 0, 448 * 1344 * 2)
    a("s_sub_u32 s32, s2, 112")
    a("s_lshr_b32 s33, s32, 4")
    a("s_and_b32 s34, s32, 15")
    a("s_mul_i32 s35, s33, 896")
    a("s_mul_i32 s38, s34, 56")
    a("s_add_u32 s35, s35, s38")
    stage(2688)
    trfrags(7, 2048, 7 * 2048)
    a("s_mul_i32 s38, s46, 4")
    a("s_sub_u32 s38, 16, s38")
    a("v_cmp_gt_u32 vcc, s38, v3")
    for i in range(28):
        a("v_cndmask_b32 v%d, 0, v%d, vcc" % (FR + i, FR + i))
    a("s_lshl_b32 s33, s33, 1")
    a("s_add_u32 s33, s33, s46")
    a("s_mul_i32 s39, s34, 14")
    a("s_mul_i32 s38, s47, 7")
    a("s_add_u32 s39, s39, s38")
    a("s_mul_i32 s39, s39, 6")
    a("s_add_u32 s39, s39, s33")
    a("s_lshl_b32 s39, s39, 10")
    a("s_add_u32 s39, s39, 0x%x" % OFF_WQKV)
    store_frags(7, 39, 6 * 1024)
    a("s_mul_i32 s42, s34, 6")
    a("s_add_u32 s42, s42, s33")
    a("s_lshl_b32 s42, s42, 10")
    a("s_add_u32 s42, s42, 0x%x" % OFF_CQKV)
    colsum(42, "qkv")

    a.label("prep_wd")
    srd(a, 28, 18, 0, 1792 * 448 * 2)
    a("s_sub_u32 s32, s2, 160")
    a("s_and_b32 s34, s32, 3")
    a("s_lshr_b32 s32, s32, 2")
    a("s_mul_i32 s35, s34, %d" % (448 * 896))
    a("s_lshl_b32 s38, s32, 6")
    a("s_add_u32 s35, s35, s38")
    stage(896)
    trfrags(7, 2048, 7 * 2048)
    a("s_lshl_b32 s33, s32, 1")
    a("s_add_u32 s33, s33, s46")
    a("s_mul_i32 s39, s33, 56")
    a("s_mul_i32 s38, s34, 14")
    a("s_add_u32 s39, s39, s38")
    a("s_mul_i32 s38, s47, 7")
    a("s_add_u32 s39, s39, s38")
    a("s_lshl_b32 s39, s39, 10")
    a("s_add_u32 s39, s39, 0x%x" % OFF_WD)
    store_frags(7, 39, 1024)
    a("s_branch prep_done")

    a.label("prep_wo")
    srd(a, 28, 10, 0, 448 * 448 * 2)
    a("s_sub_u32 s32, s2, 216")
    a("s_lshl_b32 s35, s32, 6")
    stage(896)
    trfrags(8, 28 * 64, 8 * 28 * 64)
    for j in range(8):
        a("v_cndmask_b32 v%d, v%d, 0, s[40:41]" % (FR + 4 * j + 2, FR + 4 * j + 2))
        a("v_cndmask_b32 v%d, v%d, 0, s[40:41]" % (FR + 4 * j + 3, FR + 4 * j + 3))
    a("s_lshl_b32 s33, s32, 1")
    a("s_add_u32 s33, s33, s46")
    a("s_mul_i32 s39, s47, %d" % (8 * 28))
    a("s_add_u32 s39, s39, s33")
    a("s_lshl_b32 s39, s39, 10")
    a("s_add_u32 s39, s39, 0x%x" % OFF_WO)
    store_frags(8, 39, 28 * 1024)
    a("s_branch prep_done")

    RAW = 100
    a.label("prep_wphi")
    srd(a, 28, 8, 0, 16 * 28 * 28 * 2)
    a("s_mul_i32 s35, s3, %d" % (4 * 1568))
    a("v_lshlrev_b32 v16, 1, v3")
    a("v_mul_u32_u24 v17, %d, v4" % (4 * 56))
    a("v_add_u32 v16, v16, v17")
    a("v_add_u32 v16, s35, v16")
    a("v_cndmask_b32 v18, v16, v6, s[40:41]")
    a("v_add_u32 v19, 32, v16")
    a("v_cmp_gt_u32 vcc, 12, v3")
    a("v_cndmask_b32 v19, v6, v19, vcc")
    a("v_cndmask_b32 v20, v19, v6, s[40:41]")
    for hh in range(4):
        for ft in range(2):
            vo = [16] * 4 + [18] * 4 if ft == 0 else [19] * 4 + [20] * 4
            for j in range(8):
                a("s_mov_b32 s36, 0x%x" % (hh * 1568 + kmapD_slot(j) * 56))
                a("buffer_load_ushort v%d, v%d, s[28:31], s36 offen" % (RAW + (hh * 2 + ft) * 8 + j, vo[j]))
    a("s_lshl_b32 s39, s3, 13")
    a("s_add_u32 s39, s39, 0x%x" % OFF_WPHI)
    a("s_waitcnt vmcnt(0)")
    for f in range(8):
        for i in range(4):
            a("v_lshl_or_b32 v%d, v%d, 16, v%d" % (FR + f * 4 + i, RAW + f * 8 + 2 * i + 1, RAW + f * 8 + 2 * i))
    store_frags(8, 39, 1024)
    a("s_branch prep_done")

    a.label("prep_zero")
    a("s_sub_u32 s32, s2, 263")
    a("s_lshl_b32 s39, s32, 16")
    a("s_add_u32 s39, s39, 0x%x" % OFF_KV)
    a("v_lshlrev_b32 v16, 4, v0")
    for i in range(4):
        a("v_mov_b32 v%d, 0" % (20 + i))
    for i in range(16):
        a("s_add_u32 s37, s39, 0x%x" % (i * 4096))
        a("buffer_store_dwordx4 v[20:23], v16, s[24:27], s37 offen")
    a("s_lshl_b32 s37, s32, 13")
    a("s_add_u32 s37, s37, 0x%x" % OFF_FLAG)
    a("buffer_store_dwordx4 v[20:23], v16, s[24:27], s37 offen")
    a("s_add_u32 s37, s37, 4096")
    a("buffer_store_dwordx4 v[20:23], v16, s[24:27], s37 offen")
    a("s_branch prep_done")

    a.label("prep_x")
    srd(a, 28, 4, 0, SZ_X)
    a("s_sub_u32 s32, s2, 230")
    a("s_lshl_b32 s32, s32, 2")
    a("s_add_u32 s32, s32, s3")
    a("s_mul_i32 s35, s32, 14336")
    a("s_mul_i32 s37, s3, 14336")
    for c in range(4):
        n = min(4, 14 - 4 * c)
        a("s_add_u32 s36, s37, %d" % (c * 4096))
        a("s_mov_b32 m0, s36")
        a("s_add_u32 s38, s35, %d" % (c * 4096))
        for i in range(n):
            a("buffer_load_dwordx4 v5, s[28:31], s38 offen offset:%d lds" % (i * 1024))
    a("v_mul_u32_u24 v16, 896, v3")
    a("v_lshlrev_b32 v17, 3, v4")
    a("v_add3_u32 v16, v16, v17, s37")
    a("s_mul_i32 s39, s32, %d" % (14 * 1024))
    a("s_add_u32 s39, s39, 0x%x" % OFF_X0)
    for i in range(4):
        a("v_mov_b32 v%d, 0" % (12 + i))
    a("s_waitcnt vmcnt(0)")
    for ks in range(14):
        a("ds_read_b64 %s, v16 offset:%d" % (vr(FR + 4 * ks, 2), ks * 64))
        a("ds_read_b64 %s, v16 offset:%d" % (vr(FR + 4 * ks + 2, 2), ks * 64 + 32))
    a("s_waitcnt lgkmcnt(0)")
    store_frags(14, 39, 1024)
    for ks in range(14):
        for r in range(4):
            x = FR + 4 * ks + r
            a("v_dot2c_f32_bf16 v%d, v%d, v8" % (12 + 2 * (r & 1), x))
            a("v_dot2c_f32_bf16 v%d, v%d, v%d" % (13 + 2 * (r & 1), x, x))
    a("v_add_f32 v12, v12, v14")
    a("v_add_f32 v13, v13, v15")
    butterfly(a, [12, 13], [14, 15], "v_add_f32")
    a("v_mov_b32 v14, 0")
    a("v_mov_b32 v15, 0")
    a("v_cmp_eq_u32 vcc, 0, v4")
    a("v_cndmask_b32 v12, 0, v12, vcc")
    a("v_cndmask_b32 v13, 0, v13, vcc")
    stats_addr(a, 18, 19, 3, 4, 17)
    a("s_mul_i32 s39, s32, %d" % (14 * 128))
    a("s_add_u32 s39, s39, 0x%x" % OFF_ST0)
    a("buffer_store_dwordx2 v[12:13], v18, s[24:27], s39 offen")
    a("buffer_store_dwordx2 v[14:15], v18, s[24:27], s39 offen offset:512")
    a("buffer_store_dwordx2 v[14:15], v18, s[24:27], s39 offen offset:1024")
    a("buffer_store_dwordx2 v[14:15], v19, s[24:27], s39 offen offset:1536")
    a.label("prep_done")
    if STAMP:
        _nst[0] = 4
        stamp(a)
        a("s_cmp_ge_u32 s2, %d" % NPREP)
        a("s_cbranch_scc1 prep_done2")
        a("s_mov_b32 s6, s20")
        a("s_mov_b32 s7, s21")
        stamp_flush(a, 0, 6)
        a.label("prep_done2")
    a("s_endpgm")
    kdefs[name] = (168, 64, 0)


def stubs(a, base, params, body):
    for layer, p in enumerate(params):
        kbegin(a, "%sl%d_kernel" % (base, layer))
        for r, v in p.items():
            a("s_mov_b32 s%d, 0x%x" % (r, v))
        a("s_branch %s" % body)
    a.raw(".p2align 6")
    a.label(body)


def gen_k1(a):
    name = "k1"
    stubs(a, "k1", [{52: OFF_X0, 53: OFF_ST0, 54: OFF_KV, 97: 0}], "k1_body")
    vm = VM(a)
    LDS_RED = 86016
    a("s_cmp_ge_u32 s2, 256")
    a("s_cbranch_scc1 %s_done" % name)
    stamp(a)
    a("s_load_dwordx2 s[6:7], s[0:1], 80")
    a("v_and_b32 v1, 63, v0")
    a("v_lshrrev_b32 v2, 6, v0")
    a("v_readfirstlane_b32 s3, v2")
    a("v_and_b32 v3, 15, v1")
    a("v_lshrrev_b32 v4, 4, v1")
    a("v_lshlrev_b32 v5, 4, v1")
    a("v_cmp_eq_u32 s[40:41], 3, v4")
    stats_addr(a, 6, 7, 3, 4, 8)
    a("s_and_b32 s20, s2, 7")
    a("s_lshr_b32 s21, s2, 3")
    a("s_and_b32 s22, s20, 3")
    a("s_lshl_b32 s22, s22, 2")
    a("s_and_b32 s23, s21, 3")
    a("s_add_u32 s22, s22, s23")
    a("s_lshr_b32 s23, s20, 2")
    a("s_lshl_b32 s23, s23, 3")
    a("s_lshr_b32 s24, s21, 2")
    a("s_add_u32 s23, s23, s24")
    a("s_lshl_b32 s24, s22, 3")
    a("s_add_u32 s24, s24, s3")
    a("s_mul_i32 s25, s24, %d" % (14 * 1024))
    a("s_add_u32 s25, s25, s52")
    for c in range(4):
        a("s_add_u32 s%d, s25, %d" % (44 + c, c * 4096))
    a("s_mul_i32 s26, s23, 86016")
    a("s_add_u32 s26, s26, 0x%x" % OFF_WQKV)
    a("s_lshl_b32 s27, s3, 10")
    a("s_add_u32 s26, s26, s27")
    a("s_mul_i32 s30, s24, %d" % (14 * 128))
    a("s_add_u32 s30, s30, s53")
    a("s_mul_i32 s35, s23, 6144")
    a("s_add_u32 s35, s35, 0x%x" % OFF_CQKV)
    a("s_add_u32 s36, s35, 4096")
    a("s_lshl_b32 s32, s23, 11")
    a("s_add_u32 s32, s32, 0x%x" % OFF_WPHI)
    a("s_waitcnt lgkmcnt(0)")
    srd(a, 8, 6, 0, WS_TOTAL)
    X = 200

    def xload(ks):
        vm.issue("x%d" % ks, "buffer_load_dwordx4 %s, v5, s[8:11], s%d offen offset:%d sc1" % (vr(X + ks * 4, 4), 44 + ks // 4, (ks % 4) * 1024))

    def dma(i, tag):
        a("s_mov_b32 m0, s27")
        vm.issue(tag, "buffer_load_dwordx4 v5, s[8:11], s26 offen lds")
        if i < 10:
            a("s_add_u32 s26, s26, 8192")
            a("s_add_u32 s27, s27, 8192")

    for i in range(6):
        dma(i, "dmaA")
    a("s_cmp_eq_u32 s97, 0")
    a("s_cbranch_scc1 k1_nowait")
    a("s_lshl_b32 s49, s22, 8")
    a("s_add_u32 s49, s49, s97")
    wait_flag(a, 49, 14, "c")
    a.raw("k1_nowait:")
    a.hist = []
    for i in range(7):
        xload(i)
    ST = 156
    CS = 112
    WP = 136
    late = []
    for i in range(6, 11):
        late.append(lambda i=i: dma(i, "dmaB"))
        late.append(lambda i=i: xload(i + 1))
    late.append(lambda: xload(12))
    late.append(lambda: xload(13))
    late2 = []
    late2.append(lambda: stats_load(vm, "st", ST, 6, 7, 8, 30))
    for ct in range(6):
        late2.append(lambda ct=ct: vm.issue("cs", "buffer_load_dwordx4 %s, v5, s[8:11], s%d offen offset:%d" % (vr(CS + 4 * ct, 4), 35 if ct < 4 else 36, (ct % 4) * 1024)))
    for ft in range(2):
        late2.append(lambda ft=ft: vm.issue("cs", "buffer_load_dwordx4 %s, v5, s[8:11], s32 offen offset:%d" % (vr(WP + 4 * ft, 4), ft * 1024)))
    ID = 144
    VL = 150
    MB = 152
    RI = 154
    a("v_mov_b32 v%d, 0x%x" % (VL, LOG2E))
    for i in (0, 1, 4, 5):
        a("v_mov_b32 v%d, 0" % (ID + i))
    a("v_lshrrev_b32 v8, 2, v3")
    a("v_cmp_eq_u32 vcc, v8, v4")
    a("v_and_b32 v9, 3, v3")
    a("v_and_b32 v10, 1, v9")
    a("v_lshlrev_b32 v10, 4, v10")
    a("v_mov_b32 v11, 0x3f80")
    a("v_lshlrev_b32 v11, v10, v11")
    a("v_cndmask_b32 v11, 0, v11, vcc")
    a("v_cmp_gt_u32 vcc, 2, v9")
    a("v_cndmask_b32 v%d, 0, v11, vcc" % (ID + 2))
    a("v_cndmask_b32 v%d, v11, 0, vcc" % (ID + 3))
    a("v_add_u32 v8, 43008, v5")
    WB = 16
    ACC = 64

    def wread(ks):
        dst = WB + (ks & 1) * 24
        for ct in range(6):
            off = (ks * 6 + ct) * 1024
            if ks < 7:
                a("ds_read_b128 %s, v5 offset:%d" % (vr(dst + ct * 4, 4), off))
            else:
                a("ds_read_b128 %s, v8 offset:%d" % (vr(dst + ct * 4, 4), off - 43008))

    def mm(ks, q, nq):
        cur = WB + (ks & 1) * 24
        n = 0
        for ct in (2, 3, 4, 5, 0, 1):
            d = vr(ACC + ct * 4, 4)
            a("%s %s, %s, %s, %s" % (MF, d, vr(cur + ct * 4, 4), vr(X + ks * 4, 4), "0" if ks == 0 else d))
            if n < nq and q and ct % 2 == 1:
                q.pop(0)()
                n += 1

    vm.wait("x6")
    stamp(a)
    a("s_barrier")
    wread(0)
    for ks in range(14):
        if ks == 6:
            a("s_waitcnt lgkmcnt(0)")
            mm(ks, late, 3)
            assert not late
            vm.wait("x13")
            stamp(a)
            a("s_barrier")
            wread(7)
            continue
        if ks < 13:
            wread(ks + 1)
            a("s_waitcnt lgkmcnt(6)")
        else:
            a("s_waitcnt lgkmcnt(0)")
        if ks < 6:
            mm(ks, late, 2)
        else:
            mm(ks, late2, 2)
    assert not late2
    stamp(a)

    def ln_apply(ct, dst2):
        b = ACC + ct * 4
        for r in range(4):
            a("v_fma_f32 v%d, -v%d, v%d, v%d" % (b + r, MB, CS + ct * 4 + r, b + r))
        for r in range(4):
            a("v_mul_f32 v%d, v%d, v%d" % (b + r, b + r, RI))
        a("v_cvt_pk_bf16_f32 v%d, v%d, v%d" % (dst2, b, b + 1))
        a("v_cvt_pk_bf16_f32 v%d, v%d, v%d" % (dst2 + 1, b + 2, b + 3))

    vm.wait("cs")
    stats_finish(a, ST, MB, RI, 9, 10)
    KF, VF, QF = 16, 20, 24
    a("v_mov_b32 v9, 0x3f80")
    ln_apply(2, KF)
    ln_apply(3, KF + 2)
    PK = 164
    PQ = 172
    for ft in range(2):
        a("%s %s, %s, %s, 0" % (MF, vr(PK + ft * 4, 4), vr(WP + 4 * ft, 4), vr(KF, 4)))
    ln_apply(4, VF)
    ln_apply(5, VF + 2)
    a("v_cndmask_b32 v%d, v%d, v9, s[40:41]" % (VF + 2, VF + 2))
    ln_apply(0, QF)
    ln_apply(1, QF + 2)
    for ft in range(2):
        a("%s %s, %s, %s, 0" % (MF, vr(PQ + ft * 4, 4), vr(WP + 4 * ft, 4), vr(QF, 4)))
    PH = 28
    TT = list(range(180, 200))
    PKT = 36
    VT = 52
    for i in range(6):
        a("v_mov_b32 v%d, 0" % (PKT + 4 * i + 2))
        a("v_mov_b32 v%d, 0" % (PKT + 4 * i + 3))
    softmax_pair(a, [PK + i for i in range(8)], TT, PH, PH + 4, "s[40:41]", VL)
    TD = 64
    srcs = []
    for b in range(2):
        for t in range(2):
            srcs.append((PH + 4 * b, t, PKT + (2 * b + t) * 4))
    for t in range(2):
        srcs.append((VF, t, VT + t * 4))
    for i, (src, t, dst) in enumerate(srcs):
        idr = vr(ID + 2, 4) if t == 0 else vr(ID, 4)
        a("%s %s, %s, %s, 0" % (MF, vr(TD + 4 * i, 4), vr(src, 4), idr))
    for i, (src, t, dst) in enumerate(srcs):
        a("v_cvt_pk_bf16_f32 v%d, v%d, v%d" % (dst, TD + 4 * i, TD + 4 * i + 1))
        a("v_cvt_pk_bf16_f32 v%d, v%d, v%d" % (dst + 1, TD + 4 * i + 2, TD + 4 * i + 3))
    KVR = 64
    for ft in range(4):
        for dt in range(2):
            a("%s %s, %s, %s, 0" % (MF, vr(KVR + (ft * 2 + dt) * 4, 4), vr(PKT + 4 * ft, 4), vr(VT + 4 * dt, 4)))
    stamp(a)
    a("s_lshl_b32 s33, s3, 13")
    a("s_add_u32 s33, s33, %d" % LDS_RED)
    a("v_add_u32 v9, s33, v5")
    for t in range(8):
        a("ds_write_b128 v9, %s offset:%d" % (vr(KVR + 4 * t, 4), t * 1024))
    a("s_waitcnt lgkmcnt(0)")
    a("s_barrier")
    RD = 64
    a("s_lshl_b32 s33, s3, 10")
    a("s_add_u32 s33, s33, %d" % LDS_RED)
    a("v_lshlrev_b32 v9, 2, v1")
    a("v_add_u32 v10, s33, v9")
    for w in range(8):
        for i in range(4):
            a("ds_read_b32 v%d, v10 offset:%d" % (RD + w * 4 + i, w * 8192 + i * 256))
    a("s_lshl_b32 s33, s23, 13")
    a("s_add_u32 s33, s33, s54")
    a("s_lshl_b32 s34, s3, 10")
    a("s_add_u32 s33, s33, s34")
    PHQ = 16
    softmax_pair(a, [PQ + i for i in range(8)], TT, PHQ, PHQ + 4, "s[40:41]", VL)
    a("s_waitcnt lgkmcnt(0)")
    for step in (16, 8, 4):
        for d in range(RD, RD + step):
            a("v_add_f32 v%d, v%d, v%d" % (d, d, d + step))
    for r in range(4):
        a("buffer_atomic_add_f32 v%d, v9, s[8:11], s33 offen offset:%d" % (RD + r, r * 256))
    a("s_lshl_b32 s33, s24, 4")
    a("s_add_u32 s33, s33, s23")
    a("s_lshl_b32 s33, s33, 11")
    a("s_add_u32 s33, s33, 0x%x" % OFF_PHIQ)
    for b in range(2):
        a("buffer_store_dwordx4 %s, v5, s[8:11], s33 offen offset:%d%s" % (vr(PHQ + 4 * b, 4), b * 1024, STF))
    stamp(a)
    stamp_flush(a, 1, 6)
    a.label("%s_done" % name)
    a("s_endpgm")
    kdefs["k1l0_kernel"] = (256, 100, 0)


def tile_map(a):
    a("s_and_b32 s20, s2, 7")
    a("s_lshr_b32 s21, s2, 3")
    a("s_lshl_b32 s22, s20, 2")
    a("s_and_b32 s23, s21, 3")
    a("s_add_u32 s22, s22, s23")
    a("s_lshr_b32 s23, s21, 2")
    a("s_lshr_b32 s24, s3, 1")
    a("s_lshl_b32 s25, s22, 2")
    a("s_add_u32 s24, s24, s25")
    a("s_and_b32 s25, s3, 1")
    a("s_lshl_b32 s26, s23, 1")
    a("s_add_u32 s25, s25, s26")
    a("s_mul_i32 s26, s24, 14")
    a("s_add_u32 s26, s26, s25")


SC = " sc1"


def reduce_store(a, vm, ACC, RES, name, off_out, off_st, final):
    a("s_lshl_b32 s33, s3, 14")
    a("v_add_u32 v9, s33, v5")
    for t in range(16):
        a("ds_write_b128 v9, %s offset:%d" % (vr(ACC + 4 * t, 4), t * 1024))
    a("s_lshl_b32 s33, s3, 11")
    a("v_add_u32 v9, s33, v5")
    a("v_add_u32 v10, 0x10000, v9")
    if final:
        a("s_lshl_b32 s34, s24, 4")
        a("v_add_u32 v7, s34, v3")
        a("v_mul_u32_u24 v7, 896, v7")
        a("s_lshl_b32 s34, s25, 6")
        a("v_lshlrev_b32 v11, 3, v4")
        a("v_add3_u32 v7, v7, v11, s34")
    a("s_lshl_b32 s34, s26, 10")
    a("s_add_u32 s34, s34, 0x%x" % off_out)
    a("s_lshl_b32 s35, s26, 7")
    a("s_add_u32 s35, s35, 0x%x" % off_st)
    a("v_lshlrev_b32 v8, 3, v3")
    a("v_mov_b32 v11, 0x%x" % ONES_BF)
    a("s_waitcnt lgkmcnt(0)")
    a("s_barrier")
    for w in range(8):
        for t in range(2):
            base = 9 if w < 4 else 10
            a("ds_read_b128 %s, v%d offset:%d" % (vr(ACC + (w * 2 + t) * 4, 4), base, (w & 3) * 16384 + t * 1024))
    a("s_waitcnt lgkmcnt(8)")
    for base in range(0, 16, 8):
        for i in range(8):
            d = ACC + base + i
            a("v_add_f32 v%d, v%d, v%d" % (d, d, d + 16))
    a("s_waitcnt lgkmcnt(0)")
    for base in range(32, 48, 8):
        for i in range(8):
            d = ACC + base + i
            a("v_add_f32 v%d, v%d, v%d" % (d, d, d + 16))
    for i in range(8):
        a("v_add_f32 v%d, v%d, v%d" % (ACC + i, ACC + i, ACC + 8 + i))
        a("v_add_f32 v%d, v%d, v%d" % (ACC + 32 + i, ACC + 32 + i, ACC + 40 + i))
    for i in range(8):
        a("v_add_f32 v%d, v%d, v%d" % (ACC + i, ACC + i, ACC + 32 + i))
    vm.wait("res")
    o = ACC + 8
    e = ACC + 16
    for i in range(4):
        a("v_cvt_pk_bf16_f32 v%d, v%d, v%d" % (o + i, ACC + 2 * i, ACC + 2 * i + 1))
    for i in range(4):
        a("v_lshlrev_b32 v%d, 16, v%d" % (ACC + 2 * i, o + i))
        a("v_and_b32 v%d, 0xffff0000, v%d" % (ACC + 2 * i + 1, o + i))
        a("v_lshlrev_b32 v%d, 16, v%d" % (e + 2 * i, RES + i))
        a("v_and_b32 v%d, 0xffff0000, v%d" % (e + 2 * i + 1, RES + i))
    for i in range(8):
        a("v_add_f32 v%d, v%d, v%d" % (ACC + i, ACC + i, e + i))
    for i in range(4):
        a("v_cvt_pk_bf16_f32 v%d, v%d, v%d" % (o + i, ACC + 2 * i, ACC + 2 * i + 1))
    if final:
        a("s_cmp_eq_u32 s55, 0")
        a("s_cbranch_scc1 %s_notfinal" % name)
        a("buffer_store_dwordx2 %s, v7, s[16:19], 0 offen" % vr(o, 2))
        a("buffer_store_dwordx2 %s, v7, s[16:19], 0 offen offset:32" % vr(o + 2, 2))
        a("s_branch %s_fin" % name)
        a.label("%s_notfinal" % name)
    sc = SC
    vm.issue("out", "buffer_store_dwordx4 %s, v5, s[8:11], s34 offen%s" % (vr(o, 4), sc))
    s = ACC + 24
    a("v_mov_b32 v%d, 0" % s)
    a("v_mov_b32 v%d, 0" % (s + 1))
    for i in range(4):
        a("v_dot2c_f32_bf16 v%d, v%d, v11" % (s, o + i))
        a("v_dot2c_f32_bf16 v%d, v%d, v%d" % (s + 1, o + i, o + i))
    butterfly(a, [s, s + 1], [s + 2, s + 3], "v_add_f32")
    vm.issue("out", "buffer_store_dwordx2 %s, v8, s[8:11], s35 offen%s" % (vr(s, 2), sc))
    if final:
        a.label("%s_fin" % name)


def publish(a, vm, tag, s_pub, uid):
    vm.wait(tag)
    stamp(a)
    a("s_barrier")
    a("s_cmp_lg_u32 s3, 0")
    a("s_cbranch_scc1 pub_skip_%s" % uid)
    a("v_mov_b32 v1, 0")
    a("v_mov_b32 v2, 1")
    a("s_mov_b64 s[58:59], exec")
    a("s_mov_b64 exec, 1")
    a("buffer_atomic_add v2, v1, s[8:11], s%d offen sc1" % s_pub)
    a("s_mov_b64 exec, s[58:59]")
    a("v_and_b32 v1, 63, v0")
    a.raw("pub_skip_%s:" % uid)
    a.hist = []
    a("s_nop 4")


def wait_flag(a, s_wait, count, uid):
    a("s_cmp_lg_u32 s3, 7")
    a("s_cbranch_scc1 sync_skip_%s" % uid)
    a("v_mov_b32 v1, 0")
    a("s_mov_b64 s[58:59], exec")
    a("s_mov_b64 exec, 1")
    a("s_mov_b32 s56, 0")
    a.raw("sync_poll_%s:" % uid)
    a("buffer_load_dword v2, v1, s[8:11], s%d offen sc1" % s_wait)
    a("s_waitcnt vmcnt(0)")
    a("v_readfirstlane_b32 s57, v2")
    a("s_cmp_ge_u32 s57, %d" % count)
    a("s_cbranch_scc1 sync_done_%s" % uid)
    if int(os.environ.get("SLP", "1")):
        a("s_sleep %d" % int(os.environ.get("SLP", "1")))
    a("s_add_u32 s56, s56, 1")
    a("s_cmp_lt_u32 s56, 0x8000")
    a("s_cbranch_scc1 sync_poll_%s" % uid)
    a.raw("sync_done_%s:" % uid)
    a("s_mov_b64 exec, s[58:59]")
    a("v_and_b32 v1, 63, v0")
    a.raw("sync_skip_%s:" % uid)
    a.hist = []
    a("s_nop 4")
    a("s_barrier")


def gen_kb(a):
    name = "kb"
    stubs(a, "kb", [{52: OFF_X0, 53: OFF_FLAG, 54: OFF_KV, 55: 0}, {52: OFF_X2, 53: OFF_FLAG + 16384, 54: OFF_KV + 131072, 55: 1}], "kb_body")
    vm = VM(a)
    a("s_cmp_ge_u32 s2, 224")
    a("s_cbranch_scc1 kb_tail")
    stamp(a)
    a("s_load_dwordx4 s[4:7], s[0:1], 64")
    a("s_load_dwordx2 s[36:37], s[0:1], 80")
    a("v_and_b32 v1, 63, v0")
    a("v_lshrrev_b32 v2, 6, v0")
    a("v_readfirstlane_b32 s3, v2")
    a("v_and_b32 v3, 15, v1")
    a("v_lshrrev_b32 v4, 4, v1")
    a("v_lshlrev_b32 v5, 4, v1")
    a("v_cmp_eq_u32 s[40:41], 3, v4")
    tile_map(a)
    a("s_waitcnt lgkmcnt(0)")
    srd(a, 8, 36, 0, WS_TOTAL)
    srd(a, 12, 6, 0, 256)
    srd(a, 16, 4, 0, SZ_X)
    a("s_mov_b32 s6, s36")
    a("s_mov_b32 s7, s37")
    ACC = 16
    RES = 12

    def HB(hh):
        return 80 + hh * 80

    for hh in range(2):
        hb = HB(hh)
        a("s_lshl_b32 s27, s3, 1")
        a("s_add_u32 s27, s27, %d" % hh)
        a("s_lshl_b32 s28, s27, 13")
        a("s_add_u32 s28, s28, s54")
        a("s_add_u32 s29, s28, 4096")
        for b in range(2):
            for dt in range(2):
                for hf in range(2):
                    vm.issue("kv%d" % hh, "buffer_load_dwordx4 %s, v5, s[8:11], s%d offen offset:%d" % (vr(hb + (b * 2 + dt) * 8 + hf * 4, 4), 28 + b, (hf * 2 + dt) * 1024))
        a("s_lshl_b32 s30, s22, 6")
        a("s_add_u32 s30, s30, s27")
        a("s_lshl_b32 s30, s30, 11")
        a("s_add_u32 s30, s30, 0x%x" % OFF_PHIQ)
        for rt in range(4):
            a("s_add_u32 s31, s30, %d" % (rt * 32768))
            for b in range(2):
                vm.issue("pq%d_%d" % (hh, rt), "buffer_load_dwordx4 %s, v5, s[8:11], s31 offen offset:%d" % (vr(hb + 32 + (rt * 2 + b) * 4, 4), b * 1024))
        a("s_mul_i32 s30, s27, 28")
        a("s_lshl_b32 s31, s23, 2")
        a("s_add_u32 s30, s30, s31")
        a("s_lshl_b32 s30, s30, 10")
        a("s_add_u32 s30, s30, 0x%x" % OFF_WO)
        for ct in range(4):
            vm.issue("wo%d" % hh, "buffer_load_dwordx4 %s, v5, s[8:11], s30 offen offset:%d" % (vr(hb + 64 + ct * 4, 4), ct * 1024))
    a("s_lshl_b32 s30, s26, 10")
    a("s_add_u32 s30, s30, s52")
    vm.issue("res", "buffer_load_dwordx4 v[12:15], v5, s[8:11], s30 offen")
    DN = 252
    for hh in range(2):
        hb = HB(hh)
        vm.wait("kv%d" % hh)
        for i in range(16):
            a("v_cvt_pk_bf16_f32 v%d, v%d, v%d" % (hb + i, hb + 2 * i, hb + 2 * i + 1))

        def num_mfma(rt):
            nb = hb + 16 + (rt & 1) * 8
            vm.wait("pq%d_%d" % (hh, rt))
            for dt in range(2):
                for b in range(2):
                    d = vr(nb + dt * 4, 4)
                    a("%s %s, %s, %s, %s" % (MF, d, vr(hb + (b * 2 + dt) * 4, 4), vr(hb + 32 + (rt * 2 + b) * 4, 4), "0" if b == 0 else d))

        num_mfma(0)
        for rt in range(4):
            if rt < 3:
                num_mfma(rt + 1)
            nb = hb + 16 + (rt & 1) * 8
            a("v_cndmask_b32 v%d, 0, v%d, s[40:41]" % (DN, nb + 4))
            butterfly(a, [DN], [DN + 1], "v_add_f32")
            a("v_add_f32 v%d, 0x358637bd, v%d" % (DN, DN))
            a("v_rcp_f32 v%d, v%d" % (DN, DN))
            for i in range(8):
                a("v_mul_f32 v%d, v%d, v%d" % (nb + i, nb + i, DN))
            of = 240 + (rt & 1) * 4
            for i in range(4):
                a("v_cvt_pk_bf16_f32 v%d, v%d, v%d" % (of + i, nb + 2 * i, nb + 2 * i + 1))
            if rt == 0:
                vm.wait("wo%d" % hh)
            for ct in range(4):
                d = vr(ACC + (rt * 4 + ct) * 4, 4)
                a("%s %s, %s, %s, %s" % (MF, d, vr(hb + 64 + ct * 4, 4), vr(of, 4), "0" if hh == 0 else d))
    stamp(a)
    reduce_store(a, vm, ACC, RES, "kbA", OFF_X1, OFF_ST1, False)
    a("s_lshr_b32 s50, s22, 1")
    a("s_lshl_b32 s50, s50, 8")
    a("s_add_u32 s50, s50, s53")
    a("s_add_u32 s51, s50, 4096")
    publish(a, vm, "out", 50, "a")
    LDS_ST = 112 * 1024
    LDS_HX = 116 * 1024
    a("s_and_b32 s22, s20, 3")
    a("s_lshl_b32 s22, s22, 2")
    a("s_and_b32 s23, s21, 3")
    a("s_add_u32 s22, s22, s23")
    a("s_lshr_b32 s23, s20, 2")
    a("s_mul_i32 s23, s23, 7")
    a("s_lshr_b32 s24, s21, 2")
    a("s_add_u32 s23, s23, s24")
    a("s_lshl_b32 s23, s23, 3")
    a("s_add_u32 s23, s23, s3")
    a("s_lshl_b32 s24, s22, 3")
    a("s_add_u32 s24, s24, s3")
    a("s_mul_i32 s26, s3, %d" % (14 * 1024))
    a("s_mul_i32 s27, s24, %d" % (14 * 1024))
    a("s_add_u32 s27, s27, 0x%x" % OFF_X1)
    W = 136
    ACC = 8
    XB = 72
    CS = 248
    a("s_mul_i32 s29, s23, %d" % (28 * 1024))
    a("s_add_u32 s29, s29, 0x%x" % OFF_WGU)
    for c in range(7):
        a("s_add_u32 s%d, s29, %d" % (42 + c, c * 4096))
    def wload(ks):
        for mat in range(2):
            vm.issue("w%d" % ks, "buffer_load_dwordx4 %s, v5, s[8:11], s%d offen offset:%d" % (vr(W + (ks * 2 + mat) * 4, 4), 42 + ks // 2, ((ks & 1) * 2 + mat) * 1024))

    NPRE = int(os.environ.get('NPRE', '3'))
    for ks in range(NPRE):
        wload(ks)
    a("s_lshl_b32 s31, s23, 11")
    a("s_add_u32 s31, s31, 0x%x" % OFF_CGU)
    vm.issue("cs", "buffer_load_dwordx4 v[248:251], v5, s[8:11], s31 offen")
    vm.issue("cs", "buffer_load_dwordx4 v[252:255], v5, s[8:11], s31 offen offset:1024")
    a("s_lshr_b32 s38, s21, 2")
    a("s_mul_i32 s28, s38, 224")
    a("s_mul_i32 s39, s3, 7")
    a("s_add_u32 s28, s28, s39")
    a("s_lshl_b32 s28, s28, 10")
    a("s_add_u32 s28, s28, 0x%x" % OFF_WD)
    for c in range(4):
        a("s_add_u32 s%d, s28, %d" % (84 + c, c * 56 * 1024))
        a("s_add_u32 s%d, s28, %d" % (88 + c, c * 56 * 1024 + 4096))
    WD = 136

    def wdload(j):
        i, c = j // 4, j % 4
        vm.issue("wd", "buffer_load_dwordx4 %s, v5, s[8:11], s%d offen offset:%d" % (vr(WD + j * 4, 4), (84 if i < 4 else 88) + c, (i % 4) * 1024))

    a("s_lshl_b32 s49, s22, 8")
    a("s_add_u32 s49, s49, s53")
    stamp(a)
    wait_flag(a, 49, 14, "a")
    stamp(a)
    stats_addr(a, 6, 7, 3, 4, 2)

    def xdma(lo, hi, tag):
        for c0 in range(lo, hi, 4):
            n = min(4, hi - c0)
            a("s_add_u32 s28, s26, %d" % (c0 * 1024))
            a("s_mov_b32 m0, s28")
            a("s_add_u32 s29, s27, %d" % (c0 * 1024))
            for i in range(n):
                vm.issue(tag, "buffer_load_dwordx4 v5, s[8:11], s29 offen offset:%d%s lds" % (i * 1024, SC))

    S = ACC
    xdma(0, 7, "dmaA")
    a("s_mul_i32 s30, s24, %d" % (14 * 128))
    a("s_add_u32 s30, s30, 0x%x" % OFF_ST1)
    for i in range(4):
        vm.issue("st", "buffer_load_dwordx2 %s, v%d, s[8:11], s30 offen offset:%d%s" % (vr(S + 2 * i, 2), 6 if i < 3 else 7, i * 512, SC))
    xdma(7, 14, "dmaB")
    a("v_add_u32 v6, 57344, v5")
    vm.wait("st")
    stats_finish(a, S, S + 10, S + 11, S + 8, S + 9)
    a("s_lshl_b32 s33, s3, 7")
    a("s_add_u32 s33, s33, %d" % LDS_ST)
    a("v_lshlrev_b32 v2, 3, v3")
    a("v_add_u32 v2, s33, v2")
    a("ds_write_b64 v2, %s" % vr(S + 10, 2))
    a("s_waitcnt lgkmcnt(0)")
    a("s_barrier")
    stamp(a)

    def xfrag(dst, rt, ks):
        off = (rt * 14 + ks) * 1024
        if off < 57344:
            a("ds_read_b128 %s, v5 offset:%d" % (vr(dst, 4), off))
        else:
            a("ds_read_b128 %s, v6 offset:%d" % (vr(dst, 4), off - 57344))

    for rt in range(8):
        xfrag(XB + rt * 4, rt, 0)
    for ks in range(14):
        cur = XB + (ks & 1) * 32
        nxt = XB + ((ks + 1) & 1) * 32
        if ks < 13 and ks != 6:
            for rt in range(8):
                xfrag(nxt + rt * 4, rt, ks + 1)
            vm.wait("w%d" % ks, "lgkmcnt(8)")
        else:
            vm.wait("w%d" % ks, "lgkmcnt(0)")
        q = []
        if ks + NPRE < 14:
            q.append(lambda ks=ks: wload(ks + NPRE))
        if ks >= 1:
            q.append(lambda ks=ks: wdload(2 * ks - 2))
            q.append(lambda ks=ks: wdload(2 * ks - 1))
        for rt in range(8):
            for mat in range(2):
                d = vr(ACC + (rt * 2 + mat) * 4, 4)
                a("%s %s, %s, %s, %s" % (MF, d, vr(W + (ks * 2 + mat) * 4, 4), vr(cur + rt * 4, 4), "0" if ks == 0 else d))
            if q and rt % 2 == 1:
                q.pop(0)()
        assert not q
        if ks == 6:
            vm.wait("dmaB")
            a("s_barrier")
            for rt in range(8):
                xfrag(nxt + rt * 4, rt, ks + 1)
    stamp(a)
    a("v_lshlrev_b32 v2, 3, v3")
    a("v_add_u32 v2, %d, v2" % LDS_ST)
    for rt in range(8):
        a("ds_read_b64 %s, v2 offset:%d" % (vr(XB + 2 * rt, 2), rt * 128))
    a("s_lshl_b32 s33, s22, 1")
    a("s_and_b32 s34, s3, 1")
    a("s_add_u32 s33, s33, s34")
    a("s_mul_i32 s33, s33, %d" % (4 * 56))
    a("s_lshr_b32 s34, s23, 1")
    a("s_add_u32 s33, s33, s34")
    a("s_lshl_b32 s33, s33, 10")
    a("s_add_u32 s33, s33, 0x%x" % OFF_H)
    a("s_lshr_b32 s34, s3, 1")
    a("s_lshl_b32 s34, s34, 13")
    a("s_add_u32 s34, s34, %d" % LDS_HX)
    a("s_and_b32 s35, s3, 1")
    a("s_lshl_b32 s38, s35, 3")
    a("s_add_u32 s38, s38, s34")
    a("v_add_u32 v2, s38, v5")
    a("s_lshl_b32 s38, s35, 12")
    a("s_add_u32 s38, s38, s34")
    a("v_add_u32 v6, s38, v5")
    a("v_mov_b32 v7, 0xbfb8aa3b")
    wdload(26)
    wdload(27)
    a("s_waitcnt lgkmcnt(0)")
    T = XB + 16
    for rt in range(8):
        mb, ri = XB + 2 * rt, XB + 2 * rt + 1
        g = ACC + rt * 8
        u = g + 4
        t = T + (rt & 1) * 8
        a("v_mul_f32 v%d, v%d, v7" % (t, ri))
        for r in range(4):
            a("v_fma_f32 v%d, -v%d, v%d, v%d" % (g + r, mb, CS + r, g + r))
        for r in range(4):
            a("v_fma_f32 v%d, -v%d, v%d, v%d" % (u + r, mb, CS + 4 + r, u + r))
        for r in range(4):
            a("v_mul_f32 v%d, v%d, v%d" % (g + r, g + r, t))
        for r in range(4):
            a("v_exp_f32 v%d, v%d" % (g + r, g + r))
        for r in range(4):
            a("v_mul_f32 v%d, v%d, v%d" % (u + r, u + r, ri))
        for r in range(4):
            a("v_add_f32 v%d, 1.0, v%d" % (g + r, g + r))
        for r in range(4):
            a("v_rcp_f32 v%d, v%d" % (g + r, g + r))
        for r in range(4):
            a("v_mul_f32 v%d, v%d, v%d" % (g + r, g + r, u + r))
        a("v_cvt_pk_bf16_f32 v%d, v%d, v%d" % (t + 4, g, g + 1))
        a("v_cvt_pk_bf16_f32 v%d, v%d, v%d" % (t + 5, g + 2, g + 3))
        a("ds_write_b64 v2, %s offset:%d" % (vr(t + 4, 2), rt * 1024))
    a("s_waitcnt lgkmcnt(0)")
    a("s_barrier")
    for i in range(4):
        a("ds_read_b128 %s, v6 offset:%d" % (vr(ACC + 4 * i, 4), i * 1024))
    for i in range(4):
        a("s_waitcnt lgkmcnt(%d)" % (3 - i))
        a("s_add_u32 s34, s33, %d" % (i * 56 * 1024))
        vm.issue("hout", "buffer_store_dwordx4 %s, v5, s[8:11], s34 offen%s" % (vr(ACC + 4 * i, 4), SC))
    a("s_add_u32 s49, s49, 4096")
    stamp(a)
    publish(a, vm, "hout", 49, "b")
    wait_flag(a, 51, 14, "b")
    stamp(a)
    tile_map(a)
    a("s_mul_i32 s27, s3, 7")
    a("s_mul_i32 s29, s22, 224")
    a("s_add_u32 s29, s29, s27")
    a("s_lshl_b32 s29, s29, 10")
    a("s_add_u32 s29, s29, 0x%x" % OFF_H)
    for c in range(4):
        a("s_add_u32 s%d, s29, %d" % (42 + c, c * 56 * 1024))
        a("s_add_u32 s%d, s29, %d" % (46 + c, c * 56 * 1024 + 4096)) if c < 3 else None
    a("s_add_u32 s39, s29, %d" % (3 * 56 * 1024 + 4096))
    ACC = 16
    HBUF = 80
    NST = 3

    def hissue(i):
        st = HBUF + (i % NST) * 16
        for c in range(4):
            sH = (42 + c) if i < 4 else ((46 + c) if c < 3 else 39)
            vm.issue("h%d" % i, "buffer_load_dwordx4 %s, v5, s[8:11], s%d offen offset:%d%s" % (vr(st + c * 4, 4), sH, (i % 4) * 1024, SC))

    for i in range(NST):
        hissue(i)
    a("s_lshl_b32 s30, s26, 10")
    a("s_add_u32 s30, s30, 0x%x" % OFF_X1)
    vm.issue("res", "buffer_load_dwordx4 v[12:15], v5, s[8:11], s30 offen%s" % SC)
    for i in range(7):
        vm.wait("h%d" % i)
        st = HBUF + (i % NST) * 16
        for rt in range(4):
            for ct in range(4):
                d = vr(ACC + (rt * 4 + ct) * 4, 4)
                a("%s %s, %s, %s, %s" % (MF, d, vr(WD + (i * 4 + ct) * 4, 4), vr(st + rt * 4, 4), "0" if i == 0 else d))
        if i + NST < 7:
            hissue(i + NST)
    stamp(a)
    reduce_store(a, vm, ACC, RES, "kbC", OFF_X2, OFF_ST2, True)
    stamp(a)
    stamp_flush(a, 2, 6)
    a("s_cmp_lg_u32 s55, 0")
    a("s_cbranch_scc1 kb_done")
    a("s_add_u32 s50, s50, 8192")
    a("s_waitcnt vmcnt(0)")
    vm.issue("z", "s_nop 0")
    sv = _nst[0]
    publish(a, vm, "z", 50, "c")
    _nst[0] = sv
    a.label("kb_tail")
    a("s_cmp_lg_u32 s55, 0")
    a("s_cbranch_scc1 kb_done")
    a("s_add_u32 s97, s53, 8192")
    a("s_mov_b32 s52, 0x%x" % OFF_X2)
    a("s_mov_b32 s53, 0x%x" % OFF_ST2)
    a("s_mov_b32 s54, 0x%x" % (OFF_KV + 131072))
    a("s_branch k1_body")
    a.label("kb_done")
    a("s_endpgm")
    for layer in range(2):
        kdefs["kbl%d_kernel" % layer] = (256, 100, 0)


def emit_file(a, dst):
    hdr = open("interleave_layers__linear_kernel_hedgehog__glu_gated_glu__prompt.s.ref").read().split("\n")
    head = [l for l in hdr if l.startswith(";") and "@launch" not in l and "Override launch" not in l and "grid=ceil" not in l]
    out = head[:]
    for (name, grid, block, lds, vg, sg) in kernels:
        kdefs[name] = (vg, sg, 0)
        launches.append((name, grid, block, lds))
    for (name, grid, block, lds) in launches:
        out.append("; @launch kernel=%s grid=(%d,1,1) block=(%d,1,1) lds=%d" % (name, grid, block, lds))
    out.append('.amdgcn_target "amdgcn-amd-amdhsa--gfx950"')
    out.append(".text")
    out.append(a.text())
    out.append('.section .rodata,"a"')
    for name, (vg, sg, ag) in kdefs.items():
        acc = (vg + 3) // 4 * 4
        out.append(".p2align 6")
        out.append(".amdhsa_kernel %s" % name)
        out.append("  .amdhsa_next_free_vgpr %d" % (acc + ag if ag else vg))
        out.append("  .amdhsa_next_free_sgpr %d" % (100 if STAMP else sg))
        out.append("  .amdhsa_accum_offset %d" % acc)
        out.append("  .amdhsa_group_segment_fixed_size 0")
        out.append("  .amdhsa_kernarg_size 88")
        out.append("  .amdhsa_user_sgpr_count 2")
        out.append("  .amdhsa_user_sgpr_kernarg_segment_ptr 1")
        out.append("  .amdhsa_system_sgpr_workgroup_id_x 1")
        out.append("  .amdhsa_float_denorm_mode_32 3")
        out.append(".end_amdhsa_kernel")
    open(dst, "w").write("\n".join(out) + "\n")
    print("wrote", dst, "ws total", WS_TOTAL)


def main():
    a = Asm()
    gen_prep(a)
    gen_k1(a)
    gen_kb(a)
    a.raw("code_end:")
    launches.append(("prep_kernel", NPREP, 256, 57344))
    launches.append(("k1l0_kernel", 256, 512, 86016 + 65536))
    launches.append(("kbl0_kernel", 256, 512, 148 * 1024))
    launches.append(("kbl1_kernel", 224, 512, 148 * 1024))
    dst = sys.argv[1] if len(sys.argv) > 1 else "interleave_layers__linear_kernel_hedgehog__glu_gated_glu__prompt.s"
    emit_file(a, dst)


if __name__ == "__main__":
    main()
```

```python
import sys
import os
from asmlib import Asm, vr, sr

OFF_WQKV = 0
SZ_WQKV = 16 * 84 * 1024
OFF_CQKV = OFF_WQKV + SZ_WQKV
SZ_CQKV = 16 * 6 * 1024
OFF_WPHI = OFF_CQKV + SZ_CQKV
SZ_WPHI = 16 * 2 * 1024
OFF_WO = OFF_WPHI + SZ_WPHI
SZ_WO = 16 * 28 * 1024
OFF_WGU = OFF_WO + SZ_WO
SZ_WGU = 112 * 14 * 2 * 1024
OFF_CGU = OFF_WGU + SZ_WGU
SZ_CGU = 112 * 2 * 1024
OFF_WD = OFF_CGU + SZ_CGU
SZ_WD = 28 * 56 * 1024
OFF_KV = OFF_WD + SZ_WD
SZ_KV = 2 * 16 * 8192
OFF_PHIQ = OFF_KV + SZ_KV
SZ_PHIQ = 128 * 16 * 2 * 1024
SZ_X = 2048 * 448 * 2
OFF_X0 = OFF_PHIQ + SZ_PHIQ
OFF_X2 = OFF_X0 + SZ_X
SZ_ST = 128 * 14 * 128
OFF_ST0 = OFF_X2 + SZ_X
OFF_ST2 = OFF_ST0 + SZ_ST
SZ_H = 128 * 56 * 1024
SZ_OF = 128 * 16 * 1024
OFF_X1 = OFF_ST2 + SZ_ST
OFF_ST1 = OFF_X1 + SZ_X
OFF_H = OFF_ST1 + SZ_ST
OFF_OF = OFF_H + SZ_H
BLK = SZ_X + SZ_ST + SZ_H + SZ_OF
OFF_FLAG = OFF_X1 + 2 * BLK
SZ_FLAG = 65536
WS_TOTAL = OFF_FLAG + SZ_FLAG

OOB = 0x40000000
LOG2E = 0x3FB8AA3B
ONES_BF = 0x3F803F80
MF = "v_mfma_f32_16x16x32_bf16"

kernels = []
kdefs = {}
launches = []
STAMP = int(os.environ.get("STAMP", "0"))
STF = os.environ.get("STF", "")
OFF_STAMP = 32 << 20
_nst = [0]


def stamp(a):
    if not STAMP:
        return
    i = _nst[0]
    a("%s s[%d:%d]" % ("s_memrealtime" if STAMP == 2 else "s_memtime", 60 + 2 * i, 61 + 2 * i))
    _nst[0] += 1


def stamp_flush(a, kidx, wsp):
    if not STAMP:
        return
    n = _nst[0]
    _nst[0] = 0
    a("s_waitcnt vmcnt(0) lgkmcnt(0)")
    if STAMP == 2:
        a("s_cmp_lg_u32 s3, 0")
        a("s_cbranch_scc1 st_skip_%d" % kidx)
        srd(a, 92, wsp, OFF_STAMP + kidx * 65536, 65536)
        a("s_lshl_b32 s96, s2, 7")
    else:
        a("s_cmp_ge_u32 s2, 8")
        a("s_cbranch_scc1 st_skip_%d" % kidx)
        srd(a, 92, wsp, OFF_STAMP + kidx * 16384, 16384)
        a("s_lshl_b32 s96, s2, 3")
        a("s_add_u32 s96, s96, s3")
        a("s_lshl_b32 s96, s96, 7")
    a("v_mov_b32 v1, 0")
    for i in range(n):
        a("v_mov_b32 v2, s%d" % (60 + 2 * i))
        a("buffer_store_dword v2, v1, s[92:95], s96 offen offset:%d" % (4 * i))
    a("s_waitcnt vmcnt(0)")
    a.label("st_skip_%d" % kidx)


class VM:
    def __init__(self, a):
        self.a = a
        self.q = []

    def issue(self, tag, text):
        self.a(text)
        self.q.append(tag)

    def count_after(self, tag):
        idx = max(i for i, t in enumerate(self.q) if t == tag)
        return len(self.q) - 1 - idx

    def wait(self, tag, extra=""):
        n = min(self.count_after(tag), 63)
        self.a(("s_waitcnt vmcnt(%d) " % n + extra).strip())


class Rec:
    def __init__(self):
        self.items = []

    def __call__(self, text):
        self.items.append(("i", text))

    def issue(self, tag, text):
        self.items.append(("v", tag, text))

    def wait(self, tag, extra=""):
        self.items.append(("w", tag, extra))


def play(a, vm, it):
    if it[0] == "i":
        a(it[1])
    elif it[0] == "v":
        vm.issue(it[1], it[2])
    else:
        vm.wait(it[1], it[2])


def interleave(a, vm, main, side, per):
    acc = 0.0
    j = 0
    for it in main.items:
        play(a, vm, it)
        if it[0] == "i" and it[1].startswith("v_mfma"):
            acc += per
            while acc >= 1.0 and j < len(side.items):
                play(a, vm, side.items[j])
                j += 1
                acc -= 1.0
    while j < len(side.items):
        play(a, vm, side.items[j])
        j += 1


def kbegin(a, name):
    a.raw(".globl %s" % name)
    a.raw(".p2align 8")
    a.raw(".type %s,@function" % name)
    a.raw(name + ":")
    a.hist = []


def srd(a, d, p, off, size):
    if off:
        a("s_add_u32 s%d, s%d, 0x%x" % (d, p, off))
        a("s_addc_u32 s%d, s%d, 0" % (d + 1, p + 1))
        a("s_and_b32 s%d, s%d, 0xffff" % (d + 1, d + 1))
    else:
        a("s_mov_b32 s%d, s%d" % (d, p))
        a("s_and_b32 s%d, s%d, 0xffff" % (d + 1, p + 1))
    a("s_mov_b32 s%d, 0x%x" % (d + 2, size))
    a("s_mov_b32 s%d, 0x20000" % (d + 3))


def kmapD_slot(j):
    return j if j < 4 else 12 + j


def butterfly(a, regs, tmp, op):
    for swap in ("v_permlane16_swap_b32", "v_permlane32_swap_b32"):
        for r, t in zip(regs, tmp):
            a("v_mov_b32 v%d, v%d" % (t, r))
        for r, t in zip(regs, tmp):
            a("%s v%d, v%d" % (swap, r, t))
        for r, t in zip(regs, tmp):
            a("%s v%d, v%d, v%d" % (op, r, r, t))


def ln_finish(a, vsum, vsq, vmb, vrinv, t0, t1):
    a("v_mul_f32 v%d, 0x3b124925, v%d" % (vsum, vsum))
    a("v_mul_f32 v%d, 0x3b124925, v%d" % (vsq, vsq))
    a("v_fma_f32 v%d, -v%d, v%d, v%d" % (vsq, vsum, vsum, vsq))
    a("v_max_f32 v%d, 0, v%d" % (vsq, vsq))
    a("v_cvt_pk_bf16_f32 v%d, v%d, v%d" % (t0, vsum, vsq))
    a("v_lshlrev_b32 v%d, 16, v%d" % (vmb, t0))
    a("v_and_b32 v%d, 0xffff0000, v%d" % (t1, t0))
    a("v_add_f32 v%d, 0x3727c5ac, v%d" % (t1, t1))
    a("v_cvt_pk_bf16_f32 v%d, v%d, v%d" % (t0, t1, t1))
    a("v_lshlrev_b32 v%d, 16, v%d" % (t1, t0))
    a("v_sqrt_f32 v%d, v%d" % (t1, t1))
    a("v_cvt_pk_bf16_f32 v%d, v%d, v%d" % (t0, t1, t1))
    a("v_lshlrev_b32 v%d, 16, v%d" % (t1, t0))
    a("v_rcp_f32 v%d, v%d" % (vrinv, t1))


def stats_addr(a, vst, vst3, vl15, vg, vtmp):
    a("v_lshlrev_b32 v%d, 7, v%d" % (vst, vg))
    a("v_lshlrev_b32 v%d, 3, v%d" % (vtmp, vl15))
    a("v_add_u32 v%d, v%d, v%d" % (vst, vst, vtmp))
    a("v_mov_b32 v%d, 0x%x" % (vtmp, OOB))
    a("v_cmp_gt_u32 vcc, 2, v%d" % vg)
    a("v_cndmask_b32 v%d, v%d, v%d, vcc" % (vst3, vtmp, vst))


def stats_load(vm, tag, dst, vst, vst3, s_srd, s_off):
    for i in range(4):
        vm.issue(tag, "buffer_load_dwordx2 %s, v%d, %s, s%d offen offset:%d sc1" % (vr(dst + 2 * i, 2), vst if i < 3 else vst3, sr(s_srd, 4), s_off, i * 512))


def stats_finish(a, src, vmb, vri, t0, t1):
    a("v_add_f32 v%d, v%d, v%d" % (src, src, src + 2))
    a("v_add_f32 v%d, v%d, v%d" % (src + 1, src + 1, src + 3))
    a("v_add_f32 v%d, v%d, v%d" % (src + 4, src + 4, src + 6))
    a("v_add_f32 v%d, v%d, v%d" % (src + 5, src + 5, src + 7))
    a("v_add_f32 v%d, v%d, v%d" % (src, src, src + 4))
    a("v_add_f32 v%d, v%d, v%d" % (src + 1, src + 1, src + 5))
    butterfly(a, [src, src + 1], [t0, t1], "v_add_f32")
    ln_finish(a, src, src + 1, vmb, vri, t0, t1)


def softmax_pair(a, P, T, outp, outm, sg3, vL):
    E = T[0:8]
    G = T[8:16]
    mx, mn, t0, t1 = T[16], T[17], T[18], T[19]
    a("v_max3_f32 v%d, v%d, v%d, v%d" % (t0, P[4], P[5], P[6]))
    a("v_min3_f32 v%d, v%d, v%d, v%d" % (t1, P[4], P[5], P[6]))
    a("v_max_f32 v%d, v%d, v%d" % (t0, t0, P[7]))
    a("v_min_f32 v%d, v%d, v%d" % (t1, t1, P[7]))
    a("v_cndmask_b32 v%d, v%d, v%d, %s" % (t0, t0, P[0], sg3))
    a("v_cndmask_b32 v%d, v%d, v%d, %s" % (t1, t1, P[0], sg3))
    a("v_max3_f32 v%d, v%d, v%d, v%d" % (mx, P[0], P[1], P[2]))
    a("v_min3_f32 v%d, v%d, v%d, v%d" % (mn, P[0], P[1], P[2]))
    a("v_max3_f32 v%d, v%d, v%d, v%d" % (mx, mx, P[3], t0))
    a("v_min3_f32 v%d, v%d, v%d, v%d" % (mn, mn, P[3], t1))
    for swap in ("v_permlane16_swap_b32", "v_permlane32_swap_b32"):
        a("v_mov_b32 v%d, v%d" % (t0, mx))
        a("v_mov_b32 v%d, v%d" % (t1, mn))
        a("%s v%d, v%d" % (swap, mx, t0))
        a("%s v%d, v%d" % (swap, mn, t1))
        a("v_max_f32 v%d, v%d, v%d" % (mx, mx, t0))
        a("v_min_f32 v%d, v%d, v%d" % (mn, mn, t1))
    a("v_mul_f32 v%d, v%d, v%d" % (mx, mx, vL))
    a("v_mul_f32 v%d, v%d, v%d" % (mn, mn, vL))
    for i in range(8):
        a("v_fma_f32 v%d, v%d, v%d, -v%d" % (E[i], P[i], vL, mx))
        a("v_fma_f32 v%d, -v%d, v%d, v%d" % (G[i], P[i], vL, mn))
    for i in range(8):
        a("v_exp_f32 v%d, v%d" % (E[i], E[i]))
        a("v_exp_f32 v%d, v%d" % (G[i], G[i]))
    for i in range(4, 8):
        a("v_cndmask_b32 v%d, v%d, 0, %s" % (E[i], E[i], sg3))
        a("v_cndmask_b32 v%d, v%d, 0, %s" % (G[i], G[i], sg3))
    sp, sm = mx, mn
    a("v_add_f32 v%d, v%d, v%d" % (sp, E[0], E[1]))
    a("v_add_f32 v%d, v%d, v%d" % (sm, G[0], G[1]))
    for i in range(2, 8):
        a("v_add_f32 v%d, v%d, v%d" % (sp, sp, E[i]))
        a("v_add_f32 v%d, v%d, v%d" % (sm, sm, G[i]))
    butterfly(a, [sp, sm], [t0, t1], "v_add_f32")
    a("v_rcp_f32 v%d, v%d" % (sp, sp))
    a("v_rcp_f32 v%d, v%d" % (sm, sm))
    for i in range(8):
        a("v_mul_f32 v%d, v%d, v%d" % (E[i], E[i], sp))
        a("v_mul_f32 v%d, v%d, v%d" % (G[i], G[i], sm))
    for i in range(4):
        a("v_cvt_pk_bf16_f32 v%d, v%d, v%d" % (outp + i, E[2 * i], E[2 * i + 1]))
        a("v_cvt_pk_bf16_f32 v%d, v%d, v%d" % (outm + i, G[2 * i], G[2 * i + 1]))


NPREP = 267


def gen_prep(a):
    name = "prep_kernel"
    kbegin(a, name)
    a("s_cmp_ge_u32 s2, %d" % NPREP)
    a("s_cbranch_scc1 prep_done")
    stamp(a)
    a("s_load_dwordx16 s[4:19], s[0:1], 0")
    a("s_load_dwordx2 s[20:21], s[0:1], 80")
    a("v_and_b32 v1, 63, v0")
    a("v_lshrrev_b32 v2, 6, v0")
    a("v_readfirstlane_b32 s3, v2")
    a("v_and_b32 v3, 15, v1")
    a("v_lshrrev_b32 v4, 4, v1")
    a("v_lshlrev_b32 v5, 4, v1")
    a("v_mov_b32 v6, 0x%x" % OOB)
    for i in range(4):
        a("v_mov_b32 v%d, 0x%x" % (8 + i, ONES_BF))
    a("v_cmp_eq_u32 s[40:41], 3, v4")
    a("s_and_b32 s46, s3, 1")
    a("s_lshr_b32 s47, s3, 1")
    a("v_lshrrev_b32 v7, 2, v3")
    a("v_lshl_add_u32 v7, v4, 2, v7")
    a("v_lshlrev_b32 v7, 6, v7")
    a("v_and_b32 v12, 3, v3")
    a("v_lshl_add_u32 v7, v12, 3, v7")
    a("s_lshl_b32 s48, s46, 5")
    a("v_add_u32 v7, s48, v7")
    a("v_lshrrev_b32 v13, 2, v1")
    a("v_and_b32 v14, 3, v1")
    a("v_lshlrev_b32 v14, 4, v14")
    a("s_waitcnt lgkmcnt(0)")
    srd(a, 24, 20, 0, WS_TOTAL)
    a("v_lshlrev_b32 v15, 19, v1")
    a("s_lshl_b32 s58, s3, 17")
    a("buffer_load_dword v164, v15, s[24:27], s58 offen")
    a("s_cmp_lt_u32 s2, 112")
    a("s_cbranch_scc1 prep_wgu")
    a("s_cmp_lt_u32 s2, 160")
    a("s_cbranch_scc1 prep_wqkv")
    a("s_cmp_lt_u32 s2, 216")
    a("s_cbranch_scc1 prep_wd")
    a("s_cmp_lt_u32 s2, 230")
    a("s_cbranch_scc1 prep_wo")
    a("s_cmp_lt_u32 s2, 262")
    a("s_cbranch_scc1 prep_x")
    a("s_cmp_lt_u32 s2, 263")
    a("s_cbranch_scc1 prep_wphi")
    a("s_branch prep_zero")

    FR = 32
    CSL = 29696

    def stage(RS):
        a("v_mul_u32_u24 v16, %d, v13" % RS)
        a("v_add_u32 v16, v16, v14")
        a("s_mul_i32 s36, s3, %d" % (7 * 16 * RS))
        a("s_add_u32 s36, s36, s35")
        a("s_mul_i32 s37, s3, %d" % (7 * 1024))
        for i in range(7):
            a("s_mov_b32 m0, s37")
            a("buffer_load_dwordx4 v16, s[28:31], s36 offen lds")
            if i < 6:
                a("s_add_u32 s36, s36, %d" % (16 * RS))
                a("s_add_u32 s37, s37, 1024")
        a("s_waitcnt vmcnt(0)")
        if STAMP:
            a("%s s[62:63]" % ("s_memrealtime" if STAMP == 2 else "s_memtime"))
        a("s_barrier")

    def trfrags(n, step, half_off):
        a("s_mul_i32 s36, s47, %d" % half_off)
        a("v_add_u32 v17, s36, v7")
        for j in range(n):
            a("ds_read_b64_tr_b16 %s, v17 offset:%d" % (vr(FR + 4 * j, 2), j * step))
            a("ds_read_b64_tr_b16 %s, v17 offset:%d" % (vr(FR + 4 * j + 2, 2), j * step + 1024))
        a("s_waitcnt lgkmcnt(0)")
        if STAMP:
            a("%s s[64:65]" % ("s_memrealtime" if STAMP == 2 else "s_memtime"))

    def store_frags(n, s_dst, stride):
        for j in range(n):
            a("s_add_u32 s37, s%d, 0x%x" % (s_dst, j * stride))
            a("buffer_store_dwordx4 %s, v5, s[24:27], s37 offen" % vr(FR + 4 * j, 4))
        if STAMP:
            a("%s s[66:67]" % ("s_memrealtime" if STAMP == 2 else "s_memtime"))

    def colsum(s_cdst, tag):
        for j in range(7):
            a("%s v[16:19], %s, v[8:11], %s" % (MF, vr(FR + 4 * j, 4), "0" if j == 0 else "v[16:19]"))
        a("s_lshl_b32 s36, s46, 10")
        a("s_add_u32 s36, s36, %d" % CSL)
        a("v_add_u32 v20, s36, v5")
        a("s_cmp_eq_u32 s47, 0")
        a("s_cbranch_scc1 prep_cs0_%s" % tag)
        a("ds_write_b128 v20, v[16:19]")
        a("s_waitcnt lgkmcnt(0)")
        a("s_barrier")
        a("s_branch prep_done")
        a.label("prep_cs0_%s" % tag)
        a("s_barrier")
        a("ds_read_b128 v[20:23], v20")
        a("s_waitcnt lgkmcnt(0)")
        for i in range(4):
            a("v_add_f32 v%d, v%d, v%d" % (16 + i, 16 + i, 20 + i))
        a("buffer_store_dwordx4 v[16:19], v5, s[24:27], s%d offen" % s_cdst)
        a("s_branch prep_done")

    a.label("prep_wgu")
    a("s_lshr_b32 s32, s2, 4")
    a("s_lshl_b32 s32, s32, 3")
    a("s_and_b32 s33, s2, 7")
    a("s_add_u32 s32, s32, s33")
    a("s_and_b32 s34, s32, 1")
    a("s_lshr_b32 s32, s32, 1")
    a("s_lshl_b32 s32, s32, 1")
    a("s_bfe_u32 s33, s2, 0x10003")
    a("s_add_u32 s32, s32, s33")
    a("s_cmp_eq_u32 s34, 0")
    a("s_cselect_b32 s44, s14, s16")
    a("s_cselect_b32 s45, s15, s17")
    srd(a, 28, 44, 0, 448 * 1792 * 2)
    a("s_lshl_b32 s35, s32, 6")
    stage(3584)
    trfrags(7, 2048, 7 * 2048)
    a("s_lshl_b32 s33, s32, 1")
    a("s_add_u32 s33, s33, s46")
    a("s_mul_i32 s39, s33, 14")
    a("s_mul_i32 s38, s47, 7")
    a("s_add_u32 s39, s39, s38")
    a("s_lshl_b32 s39, s39, 1")
    a("s_add_u32 s39, s39, s34")
    a("s_lshl_b32 s39, s39, 10")
    a("s_add_u32 s39, s39, 0x%x" % OFF_WGU)
    store_frags(7, 39, 2048)
    a("s_lshl_b32 s42, s33, 1")
    a("s_add_u32 s42, s42, s34")
    a("s_lshl_b32 s42, s42, 10")
    a("s_add_u32 s42, s42, 0x%x" % OFF_CGU)
    colsum(42, "gu")

    a.label("prep_wqkv")
    srd(a, 28, 6, 0, 448 * 1344 * 2)
    a("s_sub_u32 s32, s2, 112")
    a("s_lshr_b32 s33, s32, 4")
    a("s_and_b32 s34, s32, 15")
    a("s_mul_i32 s35, s33, 896")
    a("s_mul_i32 s38, s34, 56")
    a("s_add_u32 s35, s35, s38")
    stage(2688)
    trfrags(7, 2048, 7 * 2048)
    a("s_mul_i32 s38, s46, 4")
    a("s_sub_u32 s38, 16, s38")
    a("v_cmp_gt_u32 vcc, s38, v3")
    for i in range(28):
        a("v_cndmask_b32 v%d, 0, v%d, vcc" % (FR + i, FR + i))
    a("s_lshl_b32 s33, s33, 1")
    a("s_add_u32 s33, s33, s46")
    a("s_mul_i32 s39, s34, 14")
    a("s_mul_i32 s38, s47, 7")
    a("s_add_u32 s39, s39, s38")
    a("s_mul_i32 s39, s39, 6")
    a("s_add_u32 s39, s39, s33")
    a("s_lshl_b32 s39, s39, 10")
    a("s_add_u32 s39, s39, 0x%x" % OFF_WQKV)
    store_frags(7, 39, 6 * 1024)
    a("s_mul_i32 s42, s34, 6")
    a("s_add_u32 s42, s42, s33")
    a("s_lshl_b32 s42, s42, 10")
    a("s_add_u32 s42, s42, 0x%x" % OFF_CQKV)
    colsum(42, "qkv")

    a.label("prep_wd")
    srd(a, 28, 18, 0, 1792 * 448 * 2)
    a("s_sub_u32 s32, s2, 160")
    a("s_and_b32 s34, s32, 3")
    a("s_lshr_b32 s32, s32, 2")
    a("s_mul_i32 s35, s34, %d" % (448 * 896))
    a("s_lshl_b32 s38, s32, 6")
    a("s_add_u32 s35, s35, s38")
    stage(896)
    trfrags(7, 2048, 7 * 2048)
    a("s_lshl_b32 s33, s32, 1")
    a("s_add_u32 s33, s33, s46")
    a("s_mul_i32 s39, s33, 56")
    a("s_mul_i32 s38, s34, 14")
    a("s_add_u32 s39, s39, s38")
    a("s_mul_i32 s38, s47, 7")
    a("s_add_u32 s39, s39, s38")
    a("s_lshl_b32 s39, s39, 10")
    a("s_add_u32 s39, s39, 0x%x" % OFF_WD)
    store_frags(7, 39, 1024)
    a("s_branch prep_done")

    a.label("prep_wo")
    srd(a, 28, 10, 0, 448 * 448 * 2)
    a("s_sub_u32 s32, s2, 216")
    a("s_lshl_b32 s35, s32, 6")
    stage(896)
    trfrags(8, 28 * 64, 8 * 28 * 64)
    for j in range(8):
        a("v_cndmask_b32 v%d, v%d, 0, s[40:41]" % (FR + 4 * j + 2, FR + 4 * j + 2))
        a("v_cndmask_b32 v%d, v%d, 0, s[40:41]" % (FR + 4 * j + 3, FR + 4 * j + 3))
    a("s_lshl_b32 s33, s32, 1")
    a("s_add_u32 s33, s33, s46")
    a("s_mul_i32 s39, s47, %d" % (8 * 28))
    a("s_add_u32 s39, s39, s33")
    a("s_lshl_b32 s39, s39, 10")
    a("s_add_u32 s39, s39, 0x%x" % OFF_WO)
    store_frags(8, 39, 28 * 1024)
    a("s_branch prep_done")

    RAW = 100
    a.label("prep_wphi")
    srd(a, 28, 8, 0, 16 * 28 * 28 * 2)
    a("s_mul_i32 s35, s3, %d" % (4 * 1568))
    a("v_lshlrev_b32 v16, 1, v3")
    a("v_mul_u32_u24 v17, %d, v4" % (4 * 56))
    a("v_add_u32 v16, v16, v17")
    a("v_add_u32 v16, s35, v16")
    a("v_cndmask_b32 v18, v16, v6, s[40:41]")
    a("v_add_u32 v19, 32, v16")
    a("v_cmp_gt_u32 vcc, 12, v3")
    a("v_cndmask_b32 v19, v6, v19, vcc")
    a("v_cndmask_b32 v20, v19, v6, s[40:41]")
    for hh in range(4):
        for ft in range(2):
            vo = [16] * 4 + [18] * 4 if ft == 0 else [19] * 4 + [20] * 4
            for j in range(8):
                a("s_mov_b32 s36, 0x%x" % (hh * 1568 + kmapD_slot(j) * 56))
                a("buffer_load_ushort v%d, v%d, s[28:31], s36 offen" % (RAW + (hh * 2 + ft) * 8 + j, vo[j]))
    a("s_lshl_b32 s39, s3, 13")
    a("s_add_u32 s39, s39, 0x%x" % OFF_WPHI)
    a("s_waitcnt vmcnt(0)")
    for f in range(8):
        for i in range(4):
            a("v_lshl_or_b32 v%d, v%d, 16, v%d" % (FR + f * 4 + i, RAW + f * 8 + 2 * i + 1, RAW + f * 8 + 2 * i))
    store_frags(8, 39, 1024)
    a("s_branch prep_done")

    a.label("prep_zero")
    a("s_sub_u32 s32, s2, 263")
    a("s_lshl_b32 s39, s32, 16")
    a("s_add_u32 s39, s39, 0x%x" % OFF_KV)
    a("v_lshlrev_b32 v16, 4, v0")
    for i in range(4):
        a("v_mov_b32 v%d, 0" % (20 + i))
    for i in range(16):
        a("s_add_u32 s37, s39, 0x%x" % (i * 4096))
        a("buffer_store_dwordx4 v[20:23], v16, s[24:27], s37 offen")
    a("s_lshl_b32 s37, s32, 14")
    a("s_add_u32 s37, s37, 0x%x" % OFF_FLAG)
    for i in range(4):
        a("buffer_store_dwordx4 v[20:23], v16, s[24:27], s37 offen")
        a("s_add_u32 s37, s37, 4096")
    a("s_branch prep_done")

    a.label("prep_x")
    srd(a, 28, 4, 0, SZ_X)
    a("s_sub_u32 s32, s2, 230")
    a("s_lshl_b32 s32, s32, 2")
    a("s_add_u32 s32, s32, s3")
    a("s_mul_i32 s35, s32, 14336")
    a("s_mul_i32 s37, s3, 14336")
    for c in range(4):
        n = min(4, 14 - 4 * c)
        a("s_add_u32 s36, s37, %d" % (c * 4096))
        a("s_mov_b32 m0, s36")
        a("s_add_u32 s38, s35, %d" % (c * 4096))
        for i in range(n):
            a("buffer_load_dwordx4 v5, s[28:31], s38 offen offset:%d lds" % (i * 1024))
    a("v_mul_u32_u24 v16, 896, v3")
    a("v_lshlrev_b32 v17, 3, v4")
    a("v_add3_u32 v16, v16, v17, s37")
    a("s_mul_i32 s39, s32, %d" % (14 * 1024))
    a("s_add_u32 s39, s39, 0x%x" % OFF_X0)
    for i in range(4):
        a("v_mov_b32 v%d, 0" % (12 + i))
    a("s_waitcnt vmcnt(0)")
    for ks in range(14):
        a("ds_read_b64 %s, v16 offset:%d" % (vr(FR + 4 * ks, 2), ks * 64))
        a("ds_read_b64 %s, v16 offset:%d" % (vr(FR + 4 * ks + 2, 2), ks * 64 + 32))
    a("s_waitcnt lgkmcnt(0)")
    store_frags(14, 39, 1024)
    for ks in range(14):
        for r in range(4):
            x = FR + 4 * ks + r
            a("v_dot2c_f32_bf16 v%d, v%d, v8" % (12 + 2 * (r & 1), x))
            a("v_dot2c_f32_bf16 v%d, v%d, v%d" % (13 + 2 * (r & 1), x, x))
    a("v_add_f32 v12, v12, v14")
    a("v_add_f32 v13, v13, v15")
    butterfly(a, [12, 13], [14, 15], "v_add_f32")
    a("v_mov_b32 v14, 0")
    a("v_mov_b32 v15, 0")
    a("v_cmp_eq_u32 vcc, 0, v4")
    a("v_cndmask_b32 v12, 0, v12, vcc")
    a("v_cndmask_b32 v13, 0, v13, vcc")
    stats_addr(a, 18, 19, 3, 4, 17)
    a("s_mul_i32 s39, s32, %d" % (14 * 128))
    a("s_add_u32 s39, s39, 0x%x" % OFF_ST0)
    a("buffer_store_dwordx2 v[12:13], v18, s[24:27], s39 offen")
    a("buffer_store_dwordx2 v[14:15], v18, s[24:27], s39 offen offset:512")
    a("buffer_store_dwordx2 v[14:15], v18, s[24:27], s39 offen offset:1024")
    a("buffer_store_dwordx2 v[14:15], v19, s[24:27], s39 offen offset:1536")
    a.label("prep_done")
    if STAMP:
        _nst[0] = 4
        stamp(a)
        a("s_cmp_ge_u32 s2, %d" % NPREP)
        a("s_cbranch_scc1 prep_done2")
        a("s_mov_b32 s6, s20")
        a("s_mov_b32 s7, s21")
        stamp_flush(a, 0, 6)
        a.label("prep_done2")
    a("s_endpgm")
    kdefs[name] = (168, 64, 0)


def stubs(a, base, params, body):
    for layer, p in enumerate(params):
        kbegin(a, "%sl%d_kernel" % (base, layer))
        for r, v in p.items():
            a("s_mov_b32 s%d, 0x%x" % (r, v))
        a("s_branch %s" % body)
    a.raw(".p2align 6")
    a.label(body)


def gen_k1(a):
    name = "k1"
    stubs(a, "mega", [{52: OFF_X0, 98: OFF_ST0, 53: OFF_FLAG, 54: OFF_KV, 55: 0, 97: 0,
                       80: OFF_X1, 81: OFF_ST1, 82: OFF_H, 83: OFF_OF}], "k1_body")
    vm = VM(a)
    LDS_RED = 86016
    a("s_cmp_ge_u32 s2, 256")
    a("s_cbranch_scc1 kb_done")
    a("s_load_dwordx2 s[4:5], s[0:1], 64")
    a("s_load_dwordx2 s[6:7], s[0:1], 80")
    a("v_and_b32 v1, 63, v0")
    a("v_lshrrev_b32 v2, 6, v0")
    a("v_readfirstlane_b32 s3, v2")
    a("v_and_b32 v3, 15, v1")
    a("v_lshrrev_b32 v4, 4, v1")
    a("v_lshlrev_b32 v5, 4, v1")
    a("v_cmp_eq_u32 s[40:41], 3, v4")
    stats_addr(a, 6, 7, 3, 4, 8)
    a("s_and_b32 s20, s2, 7")
    a("s_lshr_b32 s21, s2, 3")
    a("s_and_b32 s22, s20, 3")
    a("s_lshl_b32 s22, s22, 2")
    a("s_and_b32 s23, s21, 3")
    a("s_add_u32 s22, s22, s23")
    a("s_lshr_b32 s23, s20, 2")
    a("s_lshl_b32 s23, s23, 3")
    a("s_lshr_b32 s24, s21, 2")
    a("s_add_u32 s23, s23, s24")
    a("s_lshl_b32 s24, s22, 3")
    a("s_add_u32 s24, s24, s3")
    a("s_mul_i32 s25, s24, %d" % (14 * 1024))
    a("s_add_u32 s25, s25, s52")
    for c in range(4):
        a("s_add_u32 s%d, s25, %d" % (44 + c, c * 4096))
    a("s_mul_i32 s26, s23, 86016")
    a("s_add_u32 s26, s26, 0x%x" % OFF_WQKV)
    a("s_lshl_b32 s27, s3, 10")
    a("s_add_u32 s26, s26, s27")
    a("s_mul_i32 s30, s24, %d" % (14 * 128))
    a("s_add_u32 s30, s30, s98")
    a("s_mul_i32 s35, s23, 6144")
    a("s_add_u32 s35, s35, 0x%x" % OFF_CQKV)
    a("s_add_u32 s36, s35, 4096")
    a("s_lshl_b32 s32, s23, 11")
    a("s_add_u32 s32, s32, 0x%x" % OFF_WPHI)
    a("s_waitcnt lgkmcnt(0)")
    srd(a, 8, 6, 0, WS_TOTAL)
    srd(a, 16, 4, 0, SZ_X)
    X = 200

    def xload(ks):
        vm.issue("x%d" % ks, "buffer_load_dwordx4 %s, v5, s[8:11], s%d offen offset:%d sc1" % (vr(X + ks * 4, 4), 44 + ks // 4, (ks % 4) * 1024))

    def dma(i, tag):
        a("s_mov_b32 m0, s27")
        vm.issue(tag, "buffer_load_dwordx4 v5, s[8:11], s26 offen lds")
        if i < 10:
            a("s_add_u32 s26, s26, 8192")
            a("s_add_u32 s27, s27, 8192")

    for i in range(6):
        dma(i, "dmaA")
    a("s_cmp_eq_u32 s97, 0")
    a("s_cbranch_scc1 k1_nowait")
    a("s_lshl_b32 s49, s22, 8")
    a("s_add_u32 s49, s49, s97")
    wait_flag(a, 49, 14, "c")
    a.raw("k1_nowait:")
    a.hist = []
    for i in range(7):
        xload(i)
    ST = 156
    CS = 112
    WP = 136
    late = []
    for i in range(6, 11):
        late.append(lambda i=i: dma(i, "dmaB"))
        late.append(lambda i=i: xload(i + 1))
    late.append(lambda: xload(12))
    late.append(lambda: xload(13))
    late2 = []
    late2.append(lambda: stats_load(vm, "st", ST, 6, 7, 8, 30))
    for ct in range(6):
        late2.append(lambda ct=ct: vm.issue("cs", "buffer_load_dwordx4 %s, v5, s[8:11], s%d offen offset:%d" % (vr(CS + 4 * ct, 4), 35 if ct < 4 else 36, (ct % 4) * 1024)))
    for ft in range(2):
        late2.append(lambda ft=ft: vm.issue("cs", "buffer_load_dwordx4 %s, v5, s[8:11], s32 offen offset:%d" % (vr(WP + 4 * ft, 4), ft * 1024)))
    ID = 144
    VL = 150
    MB = 152
    RI = 154
    a("v_mov_b32 v%d, 0x%x" % (VL, LOG2E))
    for i in (0, 1, 4, 5):
        a("v_mov_b32 v%d, 0" % (ID + i))
    a("v_lshrrev_b32 v8, 2, v3")
    a("v_cmp_eq_u32 vcc, v8, v4")
    a("v_and_b32 v9, 3, v3")
    a("v_and_b32 v10, 1, v9")
    a("v_lshlrev_b32 v10, 4, v10")
    a("v_mov_b32 v11, 0x3f80")
    a("v_lshlrev_b32 v11, v10, v11")
    a("v_cndmask_b32 v11, 0, v11, vcc")
    a("v_cmp_gt_u32 vcc, 2, v9")
    a("v_cndmask_b32 v%d, 0, v11, vcc" % (ID + 2))
    a("v_cndmask_b32 v%d, v11, 0, vcc" % (ID + 3))
    a("v_add_u32 v8, 43008, v5")
    WB = 16
    ACC = 64

    def wread(ks):
        dst = WB + (ks & 1) * 24
        for ct in range(6):
            off = (ks * 6 + ct) * 1024
            if ks < 7:
                a("ds_read_b128 %s, v5 offset:%d" % (vr(dst + ct * 4, 4), off))
            else:
                a("ds_read_b128 %s, v8 offset:%d" % (vr(dst + ct * 4, 4), off - 43008))

    def mm(ks, q, nq):
        cur = WB + (ks & 1) * 24
        n = 0
        for ct in (2, 3, 4, 5, 0, 1):
            d = vr(ACC + ct * 4, 4)
            a("%s %s, %s, %s, %s" % (MF, d, vr(cur + ct * 4, 4), vr(X + ks * 4, 4), "0" if ks == 0 else d))
            if n < nq and q and ct % 2 == 1:
                q.pop(0)()
                n += 1

    vm.wait("x6")
    stamp(a)
    a("s_barrier")
    wread(0)
    for ks in range(14):
        if ks == 6:
            a("s_waitcnt lgkmcnt(0)")
            mm(ks, late, 3)
            assert not late
            vm.wait("x13")
            stamp(a)
            a("s_barrier")
            wread(7)
            continue
        if ks < 13:
            wread(ks + 1)
            a("s_waitcnt lgkmcnt(6)")
        else:
            a("s_waitcnt lgkmcnt(0)")
        if ks < 6:
            mm(ks, late, 2)
        else:
            mm(ks, late2, 2)
    assert not late2
    stamp(a)

    def ln_apply(ct, dst2):
        b = ACC + ct * 4
        for r in range(4):
            a("v_fma_f32 v%d, -v%d, v%d, v%d" % (b + r, MB, CS + ct * 4 + r, b + r))
        for r in range(4):
            a("v_mul_f32 v%d, v%d, v%d" % (b + r, b + r, RI))
        a("v_cvt_pk_bf16_f32 v%d, v%d, v%d" % (dst2, b, b + 1))
        a("v_cvt_pk_bf16_f32 v%d, v%d, v%d" % (dst2 + 1, b + 2, b + 3))

    vm.wait("cs")
    stats_finish(a, ST, MB, RI, 9, 10)
    KF, VF, QF = 16, 20, 24
    a("v_mov_b32 v9, 0x3f80")
    ln_apply(2, KF)
    ln_apply(3, KF + 2)
    PK = 164
    PQ = 172
    for ft in range(2):
        a("%s %s, %s, %s, 0" % (MF, vr(PK + ft * 4, 4), vr(WP + 4 * ft, 4), vr(KF, 4)))
    ln_apply(4, VF)
    ln_apply(5, VF + 2)
    a("v_cndmask_b32 v%d, v%d, v9, s[40:41]" % (VF + 2, VF + 2))
    ln_apply(0, QF)
    ln_apply(1, QF + 2)
    for ft in range(2):
        a("%s %s, %s, %s, 0" % (MF, vr(PQ + ft * 4, 4), vr(WP + 4 * ft, 4), vr(QF, 4)))
    PH = 28
    TT = list(range(180, 200))
    PKT = 36
    VT = 52
    for i in range(6):
        a("v_mov_b32 v%d, 0" % (PKT + 4 * i + 2))
        a("v_mov_b32 v%d, 0" % (PKT + 4 * i + 3))
    softmax_pair(a, [PK + i for i in range(8)], TT, PH, PH + 4, "s[40:41]", VL)
    TD = 64
    srcs = []
    for b in range(2):
        for t in range(2):
            srcs.append((PH + 4 * b, t, PKT + (2 * b + t) * 4))
    for t in range(2):
        srcs.append((VF, t, VT + t * 4))
    for i, (src, t, dst) in enumerate(srcs):
        idr = vr(ID + 2, 4) if t == 0 else vr(ID, 4)
        a("%s %s, %s, %s, 0" % (MF, vr(TD + 4 * i, 4), vr(src, 4), idr))
    for i, (src, t, dst) in enumerate(srcs):
        a("v_cvt_pk_bf16_f32 v%d, v%d, v%d" % (dst, TD + 4 * i, TD + 4 * i + 1))
        a("v_cvt_pk_bf16_f32 v%d, v%d, v%d" % (dst + 1, TD + 4 * i + 2, TD + 4 * i + 3))
    KVR = 64
    for ft in range(4):
        for dt in range(2):
            a("%s %s, %s, %s, 0" % (MF, vr(KVR + (ft * 2 + dt) * 4, 4), vr(PKT + 4 * ft, 4), vr(VT + 4 * dt, 4)))
    stamp(a)
    a("s_lshl_b32 s33, s3, 13")
    a("s_add_u32 s33, s33, %d" % LDS_RED)
    a("v_add_u32 v9, s33, v5")
    for t in range(8):
        a("ds_write_b128 v9, %s offset:%d" % (vr(KVR + 4 * t, 4), t * 1024))
    a("s_waitcnt lgkmcnt(0)")
    a("s_barrier")
    RD = 64
    a("s_lshl_b32 s33, s3, 10")
    a("s_add_u32 s33, s33, %d" % LDS_RED)
    a("v_lshlrev_b32 v9, 2, v1")
    a("v_add_u32 v10, s33, v9")
    for w in range(8):
        for i in range(4):
            a("ds_read_b32 v%d, v10 offset:%d" % (RD + w * 4 + i, w * 8192 + i * 256))
    a("s_lshl_b32 s33, s23, 13")
    a("s_add_u32 s33, s33, s54")
    a("s_lshl_b32 s34, s3, 10")
    a("s_add_u32 s33, s33, s34")
    PHQ = 16
    softmax_pair(a, [PQ + i for i in range(8)], TT, PHQ, PHQ + 4, "s[40:41]", VL)
    a("s_waitcnt lgkmcnt(0)")
    for step in (16, 8, 4):
        for d in range(RD, RD + step):
            a("v_add_f32 v%d, v%d, v%d" % (d, d, d + step))
    for r in range(4):
        a("buffer_atomic_add_f32 v%d, v9, s[8:11], s33 offen offset:%d" % (RD + r, r * 256))
    a("s_lshl_b32 s34, s23, 8")
    a("s_add_u32 s34, s34, s53")
    a("s_add_u32 s34, s34, 16384")
    a("s_add_u32 s35, s53, 20480")
    a("s_and_b32 s49, s2, 15")
    a("s_lshl_b32 s49, s49, 8")
    a("s_add_u32 s49, s49, s35")
    a("s_waitcnt vmcnt(0)")
    a("s_barrier")
    a("s_cmp_lg_u32 s3, 0")
    a("s_cbranch_scc1 kv_pub_skip")
    a("v_mov_b32 v1, 0")
    a("v_mov_b32 v2, 1")
    a("s_mov_b64 s[58:59], exec")
    a("s_mov_b64 exec, 1")
    a("buffer_atomic_add v2, v1, s[8:11], s34 offen sc0 sc1")
    a("s_waitcnt vmcnt(0)")
    a("v_readfirstlane_b32 s57, v2")
    a("s_mov_b64 exec, s[58:59]")
    a("v_and_b32 v1, 63, v0")
    a("s_cmp_lg_u32 s57, 15")
    a("s_cbranch_scc1 kv_pub_skip")
    a("v_lshlrev_b32 v9, 8, v1")
    a("v_mov_b32 v2, 1")
    a("s_mov_b64 exec, 0xffff")
    a("buffer_atomic_add v2, v9, s[8:11], s35 offen sc1")
    a("s_mov_b64 exec, s[58:59]")
    a.raw("kv_pub_skip:")
    a.hist = []
    a("s_nop 4")
    wait_flag(a, 49, 16, "kv")
    KB_ = 64
    a("s_lshl_b32 s28, s23, 13")
    a("s_add_u32 s28, s28, s54")
    a("s_add_u32 s29, s28, 4096")
    for b in range(2):
        for dt in range(2):
            for hf in range(2):
                a("buffer_load_dwordx4 %s, v5, s[8:11], s%d offen offset:%d sc1" % (vr(KB_ + (b * 2 + dt) * 8 + hf * 4, 4), 28 + b, (hf * 2 + dt) * 1024))
    a("s_lshl_b32 s33, s24, 4")
    a("s_add_u32 s33, s33, s23")
    a("s_lshl_b32 s33, s33, 10")
    a("s_add_u32 s33, s33, s83")
    a("s_lshl_b32 s50, s22, 8")
    a("s_add_u32 s50, s50, s53")
    a("s_add_u32 s50, s50, 12288")
    a("s_waitcnt vmcnt(0)")
    for i in range(16):
        a("v_cvt_pk_bf16_f32 v%d, v%d, v%d" % (KB_ + i, KB_ + 2 * i, KB_ + 2 * i + 1))
    nb = KB_ + 16
    for dt in range(2):
        for b in range(2):
            d = vr(nb + dt * 4, 4)
            a("%s %s, %s, %s, %s" % (MF, d, vr(KB_ + (b * 2 + dt) * 4, 4), vr(PHQ + 4 * b, 4), "0" if b == 0 else d))
    DN = KB_ + 24
    a("v_cndmask_b32 v%d, 0, v%d, s[40:41]" % (DN, nb + 4))
    butterfly(a, [DN], [DN + 1], "v_add_f32")
    a("v_add_f32 v%d, 0x358637bd, v%d" % (DN, DN))
    a("v_rcp_f32 v%d, v%d" % (DN, DN))
    for i in range(8):
        a("v_mul_f32 v%d, v%d, v%d" % (nb + i, nb + i, DN))
    for i in range(4):
        a("v_cvt_pk_bf16_f32 v%d, v%d, v%d" % (DN + 4 + i, nb + 2 * i, nb + 2 * i + 1))
    vm.issue("of", "buffer_store_dwordx4 %s, v5, s[8:11], s33 offen sc1" % vr(DN + 4, 4))
    publish(a, vm, "of", 50, "o")
    a("s_cmp_ge_u32 s2, 224")
    a("s_cbranch_scc1 kb_tail")
    a("s_branch kb_body")
    kdefs["megal0_kernel"] = (256, 100, 0)


def tile_map(a):
    a("s_and_b32 s20, s2, 7")
    a("s_lshr_b32 s21, s2, 3")
    a("s_lshl_b32 s22, s20, 2")
    a("s_and_b32 s23, s21, 3")
    a("s_add_u32 s22, s22, s23")
    a("s_lshr_b32 s23, s21, 2")
    a("s_lshr_b32 s24, s3, 1")
    a("s_lshl_b32 s25, s22, 2")
    a("s_add_u32 s24, s24, s25")
    a("s_and_b32 s25, s3, 1")
    a("s_lshl_b32 s26, s23, 1")
    a("s_add_u32 s25, s25, s26")
    a("s_mul_i32 s26, s24, 14")
    a("s_add_u32 s26, s26, s25")


SC = " sc1"


def reduce_store(a, vm, ACC, RES, name, off_out, off_st, final):
    a("s_lshl_b32 s33, s3, 14")
    a("v_add_u32 v9, s33, v5")
    for t in range(16):
        a("ds_write_b128 v9, %s offset:%d" % (vr(ACC + 4 * t, 4), t * 1024))
    a("s_lshl_b32 s33, s3, 11")
    a("v_add_u32 v9, s33, v5")
    a("v_add_u32 v10, 0x10000, v9")
    if final:
        a("s_lshl_b32 s34, s24, 4")
        a("v_add_u32 v7, s34, v3")
        a("v_mul_u32_u24 v7, 896, v7")
        a("s_lshl_b32 s34, s25, 6")
        a("v_lshlrev_b32 v11, 3, v4")
        a("v_add3_u32 v7, v7, v11, s34")
    a("s_lshl_b32 s34, s26, 10")
    a("s_add_u32 s34, s34, %s" % (off_out if isinstance(off_out, str) else "0x%x" % off_out))
    a("s_lshl_b32 s35, s26, 7")
    a("s_add_u32 s35, s35, %s" % (off_st if isinstance(off_st, str) else "0x%x" % off_st))
    a("v_lshlrev_b32 v8, 3, v3")
    a("v_mov_b32 v11, 0x%x" % ONES_BF)
    a("s_waitcnt lgkmcnt(0)")
    a("s_barrier")
    for w in range(8):
        for t in range(2):
            base = 9 if w < 4 else 10
            a("ds_read_b128 %s, v%d offset:%d" % (vr(ACC + (w * 2 + t) * 4, 4), base, (w & 3) * 16384 + t * 1024))
    a("s_waitcnt lgkmcnt(8)")
    for base in range(0, 16, 8):
        for i in range(8):
            d = ACC + base + i
            a("v_add_f32 v%d, v%d, v%d" % (d, d, d + 16))
    a("s_waitcnt lgkmcnt(0)")
    for base in range(32, 48, 8):
        for i in range(8):
            d = ACC + base + i
            a("v_add_f32 v%d, v%d, v%d" % (d, d, d + 16))
    for i in range(8):
        a("v_add_f32 v%d, v%d, v%d" % (ACC + i, ACC + i, ACC + 8 + i))
        a("v_add_f32 v%d, v%d, v%d" % (ACC + 32 + i, ACC + 32 + i, ACC + 40 + i))
    for i in range(8):
        a("v_add_f32 v%d, v%d, v%d" % (ACC + i, ACC + i, ACC + 32 + i))
    vm.wait("res")
    o = ACC + 8
    e = ACC + 16
    for i in range(4):
        a("v_cvt_pk_bf16_f32 v%d, v%d, v%d" % (o + i, ACC + 2 * i, ACC + 2 * i + 1))
    for i in range(4):
        a("v_lshlrev_b32 v%d, 16, v%d" % (ACC + 2 * i, o + i))
        a("v_and_b32 v%d, 0xffff0000, v%d" % (ACC + 2 * i + 1, o + i))
        a("v_lshlrev_b32 v%d, 16, v%d" % (e + 2 * i, RES + i))
        a("v_and_b32 v%d, 0xffff0000, v%d" % (e + 2 * i + 1, RES + i))
    for i in range(8):
        a("v_add_f32 v%d, v%d, v%d" % (ACC + i, ACC + i, e + i))
    for i in range(4):
        a("v_cvt_pk_bf16_f32 v%d, v%d, v%d" % (o + i, ACC + 2 * i, ACC + 2 * i + 1))
    if final:
        a("s_cmp_eq_u32 s55, 0")
        a("s_cbranch_scc1 %s_notfinal" % name)
        a("buffer_store_dwordx2 %s, v7, s[16:19], 0 offen" % vr(o, 2))
        a("buffer_store_dwordx2 %s, v7, s[16:19], 0 offen offset:32" % vr(o + 2, 2))
        a("s_branch %s_fin" % name)
        a.label("%s_notfinal" % name)
    sc = SC
    vm.issue("out", "buffer_store_dwordx4 %s, v5, s[8:11], s34 offen%s" % (vr(o, 4), sc))
    s = ACC + 24
    a("v_mov_b32 v%d, 0" % s)
    a("v_mov_b32 v%d, 0" % (s + 1))
    for i in range(4):
        a("v_dot2c_f32_bf16 v%d, v%d, v11" % (s, o + i))
        a("v_dot2c_f32_bf16 v%d, v%d, v%d" % (s + 1, o + i, o + i))
    butterfly(a, [s, s + 1], [s + 2, s + 3], "v_add_f32")
    vm.issue("out", "buffer_store_dwordx2 %s, v8, s[8:11], s35 offen%s" % (vr(s, 2), sc))
    if final:
        a.label("%s_fin" % name)


def publish(a, vm, tag, s_pub, uid):
    vm.wait(tag)
    stamp(a)
    a("s_barrier")
    a("s_cmp_lg_u32 s3, 0")
    a("s_cbranch_scc1 pub_skip_%s" % uid)
    a("v_mov_b32 v1, 0")
    a("v_mov_b32 v2, 1")
    a("s_mov_b64 s[58:59], exec")
    a("s_mov_b64 exec, 1")
    a("buffer_atomic_add v2, v1, s[8:11], s%d offen sc1" % s_pub)
    a("s_mov_b64 exec, s[58:59]")
    a("v_and_b32 v1, 63, v0")
    a.raw("pub_skip_%s:" % uid)
    a.hist = []
    a("s_nop 4")


def wait_flag(a, s_wait, count, uid):
    a("s_cmp_lg_u32 s3, 7")
    a("s_cbranch_scc1 sync_skip_%s" % uid)
    a("v_mov_b32 v1, 0")
    a("s_mov_b64 s[58:59], exec")
    a("s_mov_b64 exec, 1")
    a("s_mov_b32 s56, 0")
    a.raw("sync_poll_%s:" % uid)
    a("buffer_load_dword v2, v1, s[8:11], s%d offen sc1" % s_wait)
    a("s_waitcnt vmcnt(0)")
    a("v_readfirstlane_b32 s57, v2")
    a("s_cmp_ge_u32 s57, %d" % count)
    a("s_cbranch_scc1 sync_done_%s" % uid)
    if int(os.environ.get("SLP", "1")):
        a("s_sleep %d" % int(os.environ.get("SLP", "1")))
    a("s_add_u32 s56, s56, 1")
    a("s_cmp_lt_u32 s56, 0x8000")
    a("s_cbranch_scc1 sync_poll_%s" % uid)
    a.raw("sync_done_%s:" % uid)
    a("s_mov_b64 exec, s[58:59]")
    a("v_and_b32 v1, 63, v0")
    a.raw("sync_skip_%s:" % uid)
    a.hist = []
    a("s_nop 4")
    a("s_barrier")


def gen_kb(a):
    name = "kb"
    a.label("kb_body")
    vm = VM(a)
    tile_map(a)
    ACC = 16
    RES = 12
    WO = 80
    OFR = 112
    a("s_lshl_b32 s27, s3, 1")
    a("s_mul_i32 s30, s27, 28")
    a("s_lshl_b32 s31, s23, 2")
    a("s_add_u32 s30, s30, s31")
    a("s_lshl_b32 s30, s30, 10")
    a("s_add_u32 s30, s30, 0x%x" % OFF_WO)
    a("s_add_u32 s31, s30, %d" % (28 * 1024))
    for hh in range(2):
        for ct in range(4):
            vm.issue("wo", "buffer_load_dwordx4 %s, v5, s[8:11], s%d offen offset:%d" % (vr(WO + (hh * 4 + ct) * 4, 4), 30 + hh, ct * 1024))
    a("s_lshl_b32 s30, s26, 10")
    a("s_add_u32 s30, s30, s52")
    vm.issue("res", "buffer_load_dwordx4 v[12:15], v5, s[8:11], s30 offen sc1")
    a("s_lshr_b32 s49, s22, 1")
    a("s_lshl_b32 s49, s49, 8")
    a("s_add_u32 s49, s49, s53")
    a("s_add_u32 s49, s49, 12288")
    wait_flag(a, 49, 16, "o")
    a("s_lshl_b32 s30, s22, 6")
    a("s_add_u32 s30, s30, s27")
    a("s_lshl_b32 s30, s30, 10")
    a("s_add_u32 s30, s30, s83")
    for rt in range(4):
        a("s_add_u32 s31, s30, %d" % (rt * 16384))
        for hh in range(2):
            vm.issue("o%d" % rt, "buffer_load_dwordx4 %s, v5, s[8:11], s31 offen offset:%d sc1" % (vr(OFR + (hh * 4 + rt) * 4, 4), hh * 1024))
    for rt in range(4):
        vm.wait("o%d" % rt)
        for hh in range(2):
            for ct in range(4):
                d = vr(ACC + (rt * 4 + ct) * 4, 4)
                a("%s %s, %s, %s, %s" % (MF, d, vr(WO + (hh * 4 + ct) * 4, 4), vr(OFR + (hh * 4 + rt) * 4, 4), "0" if hh == 0 else d))
    stamp(a)
    reduce_store(a, vm, ACC, RES, "kbA", "s80", "s81", False)
    a("s_lshr_b32 s50, s22, 1")
    a("s_lshl_b32 s50, s50, 8")
    a("s_add_u32 s50, s50, s53")
    a("s_add_u32 s51, s50, 4096")
    publish(a, vm, "out", 50, "a")
    LDS_ST = 112 * 1024
    LDS_HX = 116 * 1024
    a("s_and_b32 s22, s20, 3")
    a("s_lshl_b32 s22, s22, 2")
    a("s_and_b32 s23, s21, 3")
    a("s_add_u32 s22, s22, s23")
    a("s_lshr_b32 s23, s20, 2")
    a("s_mul_i32 s23, s23, 7")
    a("s_lshr_b32 s24, s21, 2")
    a("s_add_u32 s23, s23, s24")
    a("s_lshl_b32 s23, s23, 3")
    a("s_add_u32 s23, s23, s3")
    a("s_lshl_b32 s24, s22, 3")
    a("s_add_u32 s24, s24, s3")
    a("s_mul_i32 s26, s3, %d" % (14 * 1024))
    a("s_mul_i32 s27, s24, %d" % (14 * 1024))
    a("s_add_u32 s27, s27, s80")
    W = 136
    ACC = 8
    XB = 72
    CS = 248
    a("s_mul_i32 s29, s23, %d" % (28 * 1024))
    a("s_add_u32 s29, s29, 0x%x" % OFF_WGU)
    for c in range(7):
        a("s_add_u32 s%d, s29, %d" % (42 + c, c * 4096))
    def wload(ks):
        for mat in range(2):
            vm.issue("w%d" % ks, "buffer_load_dwordx4 %s, v5, s[8:11], s%d offen offset:%d" % (vr(W + (ks * 2 + mat) * 4, 4), 42 + ks // 2, ((ks & 1) * 2 + mat) * 1024))

    NPRE = int(os.environ.get('NPRE', '3'))
    for ks in range(NPRE):
        wload(ks)
    a("s_lshl_b32 s31, s23, 11")
    a("s_add_u32 s31, s31, 0x%x" % OFF_CGU)
    vm.issue("cs", "buffer_load_dwordx4 v[248:251], v5, s[8:11], s31 offen")
    vm.issue("cs", "buffer_load_dwordx4 v[252:255], v5, s[8:11], s31 offen offset:1024")
    a("s_lshr_b32 s38, s21, 2")
    a("s_mul_i32 s28, s38, 224")
    a("s_mul_i32 s39, s3, 7")
    a("s_add_u32 s28, s28, s39")
    a("s_lshl_b32 s28, s28, 10")
    a("s_add_u32 s28, s28, 0x%x" % OFF_WD)
    for c in range(4):
        a("s_add_u32 s%d, s28, %d" % (84 + c, c * 56 * 1024))
        a("s_add_u32 s%d, s28, %d" % (88 + c, c * 56 * 1024 + 4096))
    WD = 136

    def wdload(j):
        i, c = j // 4, j % 4
        vm.issue("wd", "buffer_load_dwordx4 %s, v5, s[8:11], s%d offen offset:%d" % (vr(WD + j * 4, 4), (84 if i < 4 else 88) + c, (i % 4) * 1024))

    a("s_lshl_b32 s49, s22, 8")
    a("s_add_u32 s49, s49, s53")
    stamp(a)
    wait_flag(a, 49, 14, "a")
    stamp(a)
    stats_addr(a, 6, 7, 3, 4, 2)

    def xdma(lo, hi, tag):
        for c0 in range(lo, hi, 4):
            n = min(4, hi - c0)
            a("s_add_u32 s28, s26, %d" % (c0 * 1024))
            a("s_mov_b32 m0, s28")
            a("s_add_u32 s29, s27, %d" % (c0 * 1024))
            for i in range(n):
                vm.issue(tag, "buffer_load_dwordx4 v5, s[8:11], s29 offen offset:%d%s lds" % (i * 1024, SC))

    S = ACC
    xdma(0, 7, "dmaA")
    a("s_mul_i32 s30, s24, %d" % (14 * 128))
    a("s_add_u32 s30, s30, s81")
    for i in range(4):
        vm.issue("st", "buffer_load_dwordx2 %s, v%d, s[8:11], s30 offen offset:%d%s" % (vr(S + 2 * i, 2), 6 if i < 3 else 7, i * 512, SC))
    xdma(7, 14, "dmaB")
    a("v_add_u32 v6, 57344, v5")
    vm.wait("st")
    stats_finish(a, S, S + 10, S + 11, S + 8, S + 9)
    a("s_lshl_b32 s33, s3, 7")
    a("s_add_u32 s33, s33, %d" % LDS_ST)
    a("v_lshlrev_b32 v2, 3, v3")
    a("v_add_u32 v2, s33, v2")
    a("ds_write_b64 v2, %s" % vr(S + 10, 2))
    a("s_waitcnt lgkmcnt(0)")
    a("s_barrier")
    stamp(a)

    def xfrag(dst, rt, ks):
        off = (rt * 14 + ks) * 1024
        if off < 57344:
            a("ds_read_b128 %s, v5 offset:%d" % (vr(dst, 4), off))
        else:
            a("ds_read_b128 %s, v6 offset:%d" % (vr(dst, 4), off - 57344))

    for rt in range(8):
        xfrag(XB + rt * 4, rt, 0)
    for ks in range(14):
        cur = XB + (ks & 1) * 32
        nxt = XB + ((ks + 1) & 1) * 32
        if ks < 13 and ks != 6:
            for rt in range(8):
                xfrag(nxt + rt * 4, rt, ks + 1)
            vm.wait("w%d" % ks, "lgkmcnt(8)")
        else:
            vm.wait("w%d" % ks, "lgkmcnt(0)")
        q = []
        if ks + NPRE < 14:
            q.append(lambda ks=ks: wload(ks + NPRE))
        if ks >= 1:
            q.append(lambda ks=ks: wdload(2 * ks - 2))
            q.append(lambda ks=ks: wdload(2 * ks - 1))
        for rt in range(8):
            for mat in range(2):
                d = vr(ACC + (rt * 2 + mat) * 4, 4)
                a("%s %s, %s, %s, %s" % (MF, d, vr(W + (ks * 2 + mat) * 4, 4), vr(cur + rt * 4, 4), "0" if ks == 0 else d))
            if q and rt % 2 == 1:
                q.pop(0)()
        assert not q
        if ks == 6:
            vm.wait("dmaB")
            a("s_barrier")
            for rt in range(8):
                xfrag(nxt + rt * 4, rt, ks + 1)
    stamp(a)
    a("v_lshlrev_b32 v2, 3, v3")
    a("v_add_u32 v2, %d, v2" % LDS_ST)
    for rt in range(8):
        a("ds_read_b64 %s, v2 offset:%d" % (vr(XB + 2 * rt, 2), rt * 128))
    a("s_lshl_b32 s33, s22, 1")
    a("s_and_b32 s34, s3, 1")
    a("s_add_u32 s33, s33, s34")
    a("s_mul_i32 s33, s33, %d" % (4 * 56))
    a("s_lshr_b32 s34, s23, 1")
    a("s_add_u32 s33, s33, s34")
    a("s_lshl_b32 s33, s33, 10")
    a("s_add_u32 s33, s33, s82")
    a("s_lshr_b32 s34, s3, 1")
    a("s_lshl_b32 s34, s34, 13")
    a("s_add_u32 s34, s34, %d" % LDS_HX)
    a("s_and_b32 s35, s3, 1")
    a("s_lshl_b32 s38, s35, 3")
    a("s_add_u32 s38, s38, s34")
    a("v_add_u32 v2, s38, v5")
    a("s_lshl_b32 s38, s35, 12")
    a("s_add_u32 s38, s38, s34")
    a("v_add_u32 v6, s38, v5")
    a("v_mov_b32 v7, 0xbfb8aa3b")
    wdload(26)
    wdload(27)
    a("s_waitcnt lgkmcnt(0)")
    T = XB + 16
    for rt in range(8):
        mb, ri = XB + 2 * rt, XB + 2 * rt + 1
        g = ACC + rt * 8
        u = g + 4
        t = T + (rt & 1) * 8
        a("v_mul_f32 v%d, v%d, v7" % (t, ri))
        for r in range(4):
            a("v_fma_f32 v%d, -v%d, v%d, v%d" % (g + r, mb, CS + r, g + r))
        for r in range(4):
            a("v_fma_f32 v%d, -v%d, v%d, v%d" % (u + r, mb, CS + 4 + r, u + r))
        for r in range(4):
            a("v_mul_f32 v%d, v%d, v%d" % (g + r, g + r, t))
        for r in range(4):
            a("v_exp_f32 v%d, v%d" % (g + r, g + r))
        for r in range(4):
            a("v_mul_f32 v%d, v%d, v%d" % (u + r, u + r, ri))
        for r in range(4):
            a("v_add_f32 v%d, 1.0, v%d" % (g + r, g + r))
        for r in range(4):
            a("v_rcp_f32 v%d, v%d" % (g + r, g + r))
        for r in range(4):
            a("v_mul_f32 v%d, v%d, v%d" % (g + r, g + r, u + r))
        a("v_cvt_pk_bf16_f32 v%d, v%d, v%d" % (t + 4, g, g + 1))
        a("v_cvt_pk_bf16_f32 v%d, v%d, v%d" % (t + 5, g + 2, g + 3))
        a("ds_write_b64 v2, %s offset:%d" % (vr(t + 4, 2), rt * 1024))
    a("s_waitcnt lgkmcnt(0)")
    a("s_barrier")
    for i in range(4):
        a("ds_read_b128 %s, v6 offset:%d" % (vr(ACC + 4 * i, 4), i * 1024))
    for i in range(4):
        a("s_waitcnt lgkmcnt(%d)" % (3 - i))
        a("s_add_u32 s34, s33, %d" % (i * 56 * 1024))
        vm.issue("hout", "buffer_store_dwordx4 %s, v5, s[8:11], s34 offen%s" % (vr(ACC + 4 * i, 4), SC))
    a("s_add_u32 s49, s49, 4096")
    stamp(a)
    publish(a, vm, "hout", 49, "b")
    wait_flag(a, 51, 14, "b")
    stamp(a)
    tile_map(a)
    a("s_mul_i32 s27, s3, 7")
    a("s_mul_i32 s29, s22, 224")
    a("s_add_u32 s29, s29, s27")
    a("s_lshl_b32 s29, s29, 10")
    a("s_add_u32 s29, s29, s82")
    for c in range(4):
        a("s_add_u32 s%d, s29, %d" % (42 + c, c * 56 * 1024))
        a("s_add_u32 s%d, s29, %d" % (46 + c, c * 56 * 1024 + 4096)) if c < 3 else None
    a("s_add_u32 s39, s29, %d" % (3 * 56 * 1024 + 4096))
    ACC = 16
    HBUF = 80
    NST = 3

    def hissue(i):
        st = HBUF + (i % NST) * 16
        for c in range(4):
            sH = (42 + c) if i < 4 else ((46 + c) if c < 3 else 39)
            vm.issue("h%d" % i, "buffer_load_dwordx4 %s, v5, s[8:11], s%d offen offset:%d%s" % (vr(st + c * 4, 4), sH, (i % 4) * 1024, SC))

    for i in range(NST):
        hissue(i)
    a("s_lshl_b32 s30, s26, 10")
    a("s_add_u32 s30, s30, s80")
    vm.issue("res", "buffer_load_dwordx4 v[12:15], v5, s[8:11], s30 offen%s" % SC)
    for i in range(7):
        vm.wait("h%d" % i)
        st = HBUF + (i % NST) * 16
        for rt in range(4):
            for ct in range(4):
                d = vr(ACC + (rt * 4 + ct) * 4, 4)
                a("%s %s, %s, %s, %s" % (MF, d, vr(WD + (i * 4 + ct) * 4, 4), vr(st + rt * 4, 4), "0" if i == 0 else d))
        if i + NST < 7:
            hissue(i + NST)
    stamp(a)
    reduce_store(a, vm, ACC, RES, "kbC", OFF_X2, OFF_ST2, True)
    stamp(a)
    stamp_flush(a, 2, 6)
    a("s_cmp_lg_u32 s55, 0")
    a("s_cbranch_scc1 kb_done")
    a("s_add_u32 s50, s50, 8192")
    a("s_waitcnt vmcnt(0)")
    vm.issue("z", "s_nop 0")
    sv = _nst[0]
    publish(a, vm, "z", 50, "c")
    _nst[0] = sv
    a.label("kb_tail")
    a("s_cmp_lg_u32 s55, 0")
    a("s_cbranch_scc1 kb_done")
    a("s_add_u32 s97, s53, 8192")
    a("s_mov_b32 s52, 0x%x" % OFF_X2)
    a("s_mov_b32 s98, 0x%x" % OFF_ST2)
    a("s_mov_b32 s53, 0x%x" % (OFF_FLAG + 32768))
    a("s_mov_b32 s54, 0x%x" % (OFF_KV + 131072))
    a("s_mov_b32 s55, 1")
    a("s_mov_b32 s80, 0x%x" % (OFF_X1 + BLK))
    a("s_mov_b32 s81, 0x%x" % (OFF_ST1 + BLK))
    a("s_mov_b32 s82, 0x%x" % (OFF_H + BLK))
    a("s_mov_b32 s83, 0x%x" % (OFF_OF + BLK))
    a("s_branch k1_body")
    a.label("kb_done")
    a("s_endpgm")


def emit_file(a, dst):
    hdr = open("interleave_layers__linear_kernel_hedgehog__glu_gated_glu__prompt.s.ref").read().split("\n")
    head = [l for l in hdr if l.startswith(";") and "@launch" not in l and "Override launch" not in l and "grid=ceil" not in l]
    out = head[:]
    for (name, grid, block, lds, vg, sg) in kernels:
        kdefs[name] = (vg, sg, 0)
        launches.append((name, grid, block, lds))
    for (name, grid, block, lds) in launches:
        out.append("; @launch kernel=%s grid=(%d,1,1) block=(%d,1,1) lds=%d" % (name, grid, block, lds))
    out.append('.amdgcn_target "amdgcn-amd-amdhsa--gfx950"')
    out.append(".text")
    out.append(a.text())
    out.append('.section .rodata,"a"')
    for name, (vg, sg, ag) in kdefs.items():
        acc = (vg + 3) // 4 * 4
        out.append(".p2align 6")
        out.append(".amdhsa_kernel %s" % name)
        out.append("  .amdhsa_next_free_vgpr %d" % (acc + ag if ag else vg))
        out.append("  .amdhsa_next_free_sgpr %d" % (100 if STAMP else sg))
        out.append("  .amdhsa_accum_offset %d" % acc)
        out.append("  .amdhsa_group_segment_fixed_size 0")
        out.append("  .amdhsa_kernarg_size 88")
        out.append("  .amdhsa_user_sgpr_count 2")
        out.append("  .amdhsa_user_sgpr_kernarg_segment_ptr 1")
        out.append("  .amdhsa_system_sgpr_workgroup_id_x 1")
        out.append("  .amdhsa_float_denorm_mode_32 3")
        out.append(".end_amdhsa_kernel")
    open(dst, "w").write("\n".join(out) + "\n")
    print("wrote", dst, "ws total", WS_TOTAL)


def main():
    a = Asm()
    gen_prep(a)
    gen_k1(a)
    gen_kb(a)
    a.raw("code_end:")
    launches.append(("prep_kernel", NPREP, 256, 57344))
    launches.append(("megal0_kernel", 256, 512, 148 * 1024))
    dst = sys.argv[1] if len(sys.argv) > 1 else "interleave_layers__linear_kernel_hedgehog__glu_gated_glu__prompt.s"
    emit_file(a, dst)


if __name__ == "__main__":
    main()
```

```python
import sys
import os
from asmlib import Asm, vr, sr

OFF_WQKV = 0
SZ_WQKV = 16 * 84 * 1024
OFF_CQKV = OFF_WQKV + SZ_WQKV
SZ_CQKV = 16 * 6 * 1024
OFF_WPHI = OFF_CQKV + SZ_CQKV
SZ_WPHI = 16 * 2 * 1024
OFF_WO = OFF_WPHI + SZ_WPHI
SZ_WO = 16 * 28 * 1024
OFF_WGU = OFF_WO + SZ_WO
SZ_WGU = 112 * 14 * 2 * 1024
OFF_CGU = OFF_WGU + SZ_WGU
SZ_CGU = 112 * 2 * 1024
OFF_WD = OFF_CGU + SZ_CGU
SZ_WD = 28 * 56 * 1024
OFF_KV = OFF_WD + SZ_WD
SZ_KV = 2 * 16 * 8192
OFF_PHIQ = OFF_KV + SZ_KV
SZ_PHIQ = 128 * 16 * 2 * 1024
SZ_X = 2048 * 448 * 2
OFF_X0 = OFF_PHIQ + SZ_PHIQ
OFF_X2 = OFF_X0 + SZ_X
SZ_ST = 128 * 14 * 128
OFF_ST0 = OFF_X2 + SZ_X
OFF_ST2 = OFF_ST0 + SZ_ST
SZ_H = 128 * 56 * 1024
SZ_OF = 128 * 16 * 1024
OFF_X1 = OFF_ST2 + SZ_ST
OFF_ST1 = OFF_X1 + SZ_X
OFF_H = OFF_ST1 + SZ_ST
OFF_OF = OFF_H + SZ_H
BLK = SZ_X + SZ_ST + SZ_H + SZ_OF
OFF_FLAG = OFF_X1 + 2 * BLK
SZ_FLAG = 65536
WS_TOTAL = OFF_FLAG + SZ_FLAG

OOB = 0x40000000
LOG2E = 0x3FB8AA3B
ONES_BF = 0x3F803F80
MF = "v_mfma_f32_16x16x32_bf16"

kernels = []
kdefs = {}
launches = []
STAMP = int(os.environ.get("STAMP", "0"))
STF = os.environ.get("STF", "")
OFF_STAMP = 48 << 20
_nst = [0]


def mstamp(a, i):
    if STAMP == 3:
        a("s_memrealtime s[%d:%d]" % (60 + 2 * i, 61 + 2 * i))


def stamp(a):
    if not STAMP or STAMP == 3:
        return
    i = _nst[0]
    a("%s s[%d:%d]" % ("s_memrealtime" if STAMP == 2 else "s_memtime", 60 + 2 * i, 61 + 2 * i))
    _nst[0] += 1


def stamp_flush(a, kidx, wsp):
    if not STAMP:
        return
    if STAMP == 3:
        if kidx != 2:
            return
        _nst[0] = 10
    n = _nst[0]
    _nst[0] = 0
    a("s_waitcnt vmcnt(0) lgkmcnt(0)")
    if STAMP >= 2:
        a("s_cmp_lg_u32 s3, 0")
        a("s_cbranch_scc1 st_skip_%d" % kidx)
        srd(a, 92, wsp, OFF_STAMP + kidx * 65536, 65536)
        a("s_lshl_b32 s96, s2, 7")
    else:
        a("s_cmp_ge_u32 s2, 8")
        a("s_cbranch_scc1 st_skip_%d" % kidx)
        srd(a, 92, wsp, OFF_STAMP + kidx * 16384, 16384)
        a("s_lshl_b32 s96, s2, 3")
        a("s_add_u32 s96, s96, s3")
        a("s_lshl_b32 s96, s96, 7")
    a("v_mov_b32 v1, 0")
    for i in range(n):
        a("v_mov_b32 v2, s%d" % (60 + 2 * i))
        a("buffer_store_dword v2, v1, s[92:95], s96 offen offset:%d" % (4 * i))
    a("s_waitcnt vmcnt(0)")
    a.label("st_skip_%d" % kidx)


class VM:
    def __init__(self, a):
        self.a = a
        self.q = []

    def issue(self, tag, text):
        self.a(text)
        self.q.append(tag)

    def count_after(self, tag):
        idx = max(i for i, t in enumerate(self.q) if t == tag)
        return len(self.q) - 1 - idx

    def wait(self, tag, extra=""):
        n = min(self.count_after(tag), 63)
        self.a(("s_waitcnt vmcnt(%d) " % n + extra).strip())


class Rec:
    def __init__(self):
        self.items = []

    def __call__(self, text):
        self.items.append(("i", text))

    def issue(self, tag, text):
        self.items.append(("v", tag, text))

    def wait(self, tag, extra=""):
        self.items.append(("w", tag, extra))


def play(a, vm, it):
    if it[0] == "i":
        a(it[1])
    elif it[0] == "v":
        vm.issue(it[1], it[2])
    else:
        vm.wait(it[1], it[2])


def interleave(a, vm, main, side, per):
    acc = 0.0
    j = 0
    for it in main.items:
        play(a, vm, it)
        if it[0] == "i" and it[1].startswith("v_mfma"):
            acc += per
            while acc >= 1.0 and j < len(side.items):
                play(a, vm, side.items[j])
                j += 1
                acc -= 1.0
    while j < len(side.items):
        play(a, vm, side.items[j])
        j += 1


def kbegin(a, name):
    a.raw(".globl %s" % name)
    a.raw(".p2align 8")
    a.raw(".type %s,@function" % name)
    a.raw(name + ":")
    a.hist = []


def srd(a, d, p, off, size):
    if off:
        a("s_add_u32 s%d, s%d, 0x%x" % (d, p, off))
        a("s_addc_u32 s%d, s%d, 0" % (d + 1, p + 1))
        a("s_and_b32 s%d, s%d, 0xffff" % (d + 1, d + 1))
    else:
        a("s_mov_b32 s%d, s%d" % (d, p))
        a("s_and_b32 s%d, s%d, 0xffff" % (d + 1, p + 1))
    a("s_mov_b32 s%d, 0x%x" % (d + 2, size))
    a("s_mov_b32 s%d, 0x20000" % (d + 3))


def kmapD_slot(j):
    return j if j < 4 else 12 + j


def butterfly(a, regs, tmp, op):
    for swap in ("v_permlane16_swap_b32", "v_permlane32_swap_b32"):
        for r, t in zip(regs, tmp):
            a("v_mov_b32 v%d, v%d" % (t, r))
        for r, t in zip(regs, tmp):
            a("%s v%d, v%d" % (swap, r, t))
        for r, t in zip(regs, tmp):
            a("%s v%d, v%d, v%d" % (op, r, r, t))


def ln_finish(a, vsum, vsq, vmb, vrinv, t0, t1):
    a("v_mul_f32 v%d, 0x3b124925, v%d" % (vsum, vsum))
    a("v_mul_f32 v%d, 0x3b124925, v%d" % (vsq, vsq))
    a("v_fma_f32 v%d, -v%d, v%d, v%d" % (vsq, vsum, vsum, vsq))
    a("v_max_f32 v%d, 0, v%d" % (vsq, vsq))
    a("v_cvt_pk_bf16_f32 v%d, v%d, v%d" % (t0, vsum, vsq))
    a("v_lshlrev_b32 v%d, 16, v%d" % (vmb, t0))
    a("v_and_b32 v%d, 0xffff0000, v%d" % (t1, t0))
    a("v_add_f32 v%d, 0x3727c5ac, v%d" % (t1, t1))
    a("v_cvt_pk_bf16_f32 v%d, v%d, v%d" % (t0, t1, t1))
    a("v_lshlrev_b32 v%d, 16, v%d" % (t1, t0))
    a("v_sqrt_f32 v%d, v%d" % (t1, t1))
    a("v_cvt_pk_bf16_f32 v%d, v%d, v%d" % (t0, t1, t1))
    a("v_lshlrev_b32 v%d, 16, v%d" % (t1, t0))
    a("v_rcp_f32 v%d, v%d" % (vrinv, t1))


def stats_addr(a, vst, vst3, vl15, vg, vtmp):
    a("v_lshlrev_b32 v%d, 7, v%d" % (vst, vg))
    a("v_lshlrev_b32 v%d, 3, v%d" % (vtmp, vl15))
    a("v_add_u32 v%d, v%d, v%d" % (vst, vst, vtmp))
    a("v_mov_b32 v%d, 0x%x" % (vtmp, OOB))
    a("v_cmp_gt_u32 vcc, 2, v%d" % vg)
    a("v_cndmask_b32 v%d, v%d, v%d, vcc" % (vst3, vtmp, vst))


def stats_load(vm, tag, dst, vst, vst3, s_srd, s_off):
    for i in range(4):
        vm.issue(tag, "buffer_load_dwordx2 %s, v%d, %s, s%d offen offset:%d sc1" % (vr(dst + 2 * i, 2), vst if i < 3 else vst3, sr(s_srd, 4), s_off, i * 512))


def stats_finish(a, src, vmb, vri, t0, t1):
    a("v_add_f32 v%d, v%d, v%d" % (src, src, src + 2))
    a("v_add_f32 v%d, v%d, v%d" % (src + 1, src + 1, src + 3))
    a("v_add_f32 v%d, v%d, v%d" % (src + 4, src + 4, src + 6))
    a("v_add_f32 v%d, v%d, v%d" % (src + 5, src + 5, src + 7))
    a("v_add_f32 v%d, v%d, v%d" % (src, src, src + 4))
    a("v_add_f32 v%d, v%d, v%d" % (src + 1, src + 1, src + 5))
    butterfly(a, [src, src + 1], [t0, t1], "v_add_f32")
    ln_finish(a, src, src + 1, vmb, vri, t0, t1)


def softmax_pair(a, P, T, outp, outm, sg3, vL):
    E = T[0:8]
    G = T[8:16]
    mx, mn, t0, t1 = T[16], T[17], T[18], T[19]
    a("v_max3_f32 v%d, v%d, v%d, v%d" % (t0, P[4], P[5], P[6]))
    a("v_min3_f32 v%d, v%d, v%d, v%d" % (t1, P[4], P[5], P[6]))
    a("v_max_f32 v%d, v%d, v%d" % (t0, t0, P[7]))
    a("v_min_f32 v%d, v%d, v%d" % (t1, t1, P[7]))
    a("v_cndmask_b32 v%d, v%d, v%d, %s" % (t0, t0, P[0], sg3))
    a("v_cndmask_b32 v%d, v%d, v%d, %s" % (t1, t1, P[0], sg3))
    a("v_max3_f32 v%d, v%d, v%d, v%d" % (mx, P[0], P[1], P[2]))
    a("v_min3_f32 v%d, v%d, v%d, v%d" % (mn, P[0], P[1], P[2]))
    a("v_max3_f32 v%d, v%d, v%d, v%d" % (mx, mx, P[3], t0))
    a("v_min3_f32 v%d, v%d, v%d, v%d" % (mn, mn, P[3], t1))
    for swap in ("v_permlane16_swap_b32", "v_permlane32_swap_b32"):
        a("v_mov_b32 v%d, v%d" % (t0, mx))
        a("v_mov_b32 v%d, v%d" % (t1, mn))
        a("%s v%d, v%d" % (swap, mx, t0))
        a("%s v%d, v%d" % (swap, mn, t1))
        a("v_max_f32 v%d, v%d, v%d" % (mx, mx, t0))
        a("v_min_f32 v%d, v%d, v%d" % (mn, mn, t1))
    a("v_mul_f32 v%d, v%d, v%d" % (mx, mx, vL))
    a("v_mul_f32 v%d, v%d, v%d" % (mn, mn, vL))
    for i in range(8):
        a("v_fma_f32 v%d, v%d, v%d, -v%d" % (E[i], P[i], vL, mx))
        a("v_fma_f32 v%d, -v%d, v%d, v%d" % (G[i], P[i], vL, mn))
    for i in range(8):
        a("v_exp_f32 v%d, v%d" % (E[i], E[i]))
        a("v_exp_f32 v%d, v%d" % (G[i], G[i]))
    for i in range(4, 8):
        a("v_cndmask_b32 v%d, v%d, 0, %s" % (E[i], E[i], sg3))
        a("v_cndmask_b32 v%d, v%d, 0, %s" % (G[i], G[i], sg3))
    sp, sm = mx, mn
    a("v_add_f32 v%d, v%d, v%d" % (sp, E[0], E[1]))
    a("v_add_f32 v%d, v%d, v%d" % (sm, G[0], G[1]))
    for i in range(2, 8):
        a("v_add_f32 v%d, v%d, v%d" % (sp, sp, E[i]))
        a("v_add_f32 v%d, v%d, v%d" % (sm, sm, G[i]))
    butterfly(a, [sp, sm], [t0, t1], "v_add_f32")
    a("v_rcp_f32 v%d, v%d" % (sp, sp))
    a("v_rcp_f32 v%d, v%d" % (sm, sm))
    for i in range(8):
        a("v_mul_f32 v%d, v%d, v%d" % (E[i], E[i], sp))
        a("v_mul_f32 v%d, v%d, v%d" % (G[i], G[i], sm))
    for i in range(4):
        a("v_cvt_pk_bf16_f32 v%d, v%d, v%d" % (outp + i, E[2 * i], E[2 * i + 1]))
        a("v_cvt_pk_bf16_f32 v%d, v%d, v%d" % (outm + i, G[2 * i], G[2 * i + 1]))


NPREP = 267


def gen_prep(a):
    name = "prep_kernel"
    kbegin(a, name)
    a("s_cmp_ge_u32 s2, %d" % NPREP)
    a("s_cbranch_scc1 prep_done")
    stamp(a)
    a("s_load_dwordx16 s[4:19], s[0:1], 0")
    a("s_load_dwordx2 s[20:21], s[0:1], 80")
    a("v_and_b32 v1, 63, v0")
    a("v_lshrrev_b32 v2, 6, v0")
    a("v_readfirstlane_b32 s3, v2")
    a("v_and_b32 v3, 15, v1")
    a("v_lshrrev_b32 v4, 4, v1")
    a("v_lshlrev_b32 v5, 4, v1")
    a("v_mov_b32 v6, 0x%x" % OOB)
    for i in range(4):
        a("v_mov_b32 v%d, 0x%x" % (8 + i, ONES_BF))
    a("v_cmp_eq_u32 s[40:41], 3, v4")
    a("s_and_b32 s46, s3, 1")
    a("s_lshr_b32 s47, s3, 1")
    a("v_lshrrev_b32 v7, 2, v3")
    a("v_lshl_add_u32 v7, v4, 2, v7")
    a("v_lshlrev_b32 v7, 6, v7")
    a("v_and_b32 v12, 3, v3")
    a("v_lshl_add_u32 v7, v12, 3, v7")
    a("s_lshl_b32 s48, s46, 5")
    a("v_add_u32 v7, s48, v7")
    a("v_lshrrev_b32 v13, 2, v1")
    a("v_and_b32 v14, 3, v1")
    a("v_lshlrev_b32 v14, 4, v14")
    a("s_waitcnt lgkmcnt(0)")
    srd(a, 24, 20, 0, WS_TOTAL)
    a("v_lshlrev_b32 v15, 19, v1")
    a("s_lshl_b32 s58, s3, 17")
    a("buffer_load_dword v164, v15, s[24:27], s58 offen")
    a("s_cmp_lt_u32 s2, 112")
    a("s_cbranch_scc1 prep_wgu")
    a("s_cmp_lt_u32 s2, 160")
    a("s_cbranch_scc1 prep_wqkv")
    a("s_cmp_lt_u32 s2, 216")
    a("s_cbranch_scc1 prep_wd")
    a("s_cmp_lt_u32 s2, 230")
    a("s_cbranch_scc1 prep_wo")
    a("s_cmp_lt_u32 s2, 262")
    a("s_cbranch_scc1 prep_x")
    a("s_cmp_lt_u32 s2, 263")
    a("s_cbranch_scc1 prep_wphi")
    a("s_branch prep_zero")

    FR = 32
    CSL = 29696

    def stage(RS):
        a("v_mul_u32_u24 v16, %d, v13" % RS)
        a("v_add_u32 v16, v16, v14")
        a("s_mul_i32 s36, s3, %d" % (7 * 16 * RS))
        a("s_add_u32 s36, s36, s35")
        a("s_mul_i32 s37, s3, %d" % (7 * 1024))
        for i in range(7):
            a("s_mov_b32 m0, s37")
            a("buffer_load_dwordx4 v16, s[28:31], s36 offen lds")
            if i < 6:
                a("s_add_u32 s36, s36, %d" % (16 * RS))
                a("s_add_u32 s37, s37, 1024")
        a("s_waitcnt vmcnt(0)")
        if STAMP:
            a("%s s[62:63]" % ("s_memrealtime" if STAMP == 2 else "s_memtime"))
        a("s_barrier")

    def trfrags(n, step, half_off):
        a("s_mul_i32 s36, s47, %d" % half_off)
        a("v_add_u32 v17, s36, v7")
        for j in range(n):
            a("ds_read_b64_tr_b16 %s, v17 offset:%d" % (vr(FR + 4 * j, 2), j * step))
            a("ds_read_b64_tr_b16 %s, v17 offset:%d" % (vr(FR + 4 * j + 2, 2), j * step + 1024))
        a("s_waitcnt lgkmcnt(0)")
        if STAMP:
            a("%s s[64:65]" % ("s_memrealtime" if STAMP == 2 else "s_memtime"))

    def store_frags(n, s_dst, stride):
        for j in range(n):
            a("s_add_u32 s37, s%d, 0x%x" % (s_dst, j * stride))
            a("buffer_store_dwordx4 %s, v5, s[24:27], s37 offen" % vr(FR + 4 * j, 4))
        if STAMP:
            a("%s s[66:67]" % ("s_memrealtime" if STAMP == 2 else "s_memtime"))

    def colsum(s_cdst, tag):
        for j in range(7):
            a("%s v[16:19], %s, v[8:11], %s" % (MF, vr(FR + 4 * j, 4), "0" if j == 0 else "v[16:19]"))
        a("s_lshl_b32 s36, s46, 10")
        a("s_add_u32 s36, s36, %d" % CSL)
        a("v_add_u32 v20, s36, v5")
        a("s_cmp_eq_u32 s47, 0")
        a("s_cbranch_scc1 prep_cs0_%s" % tag)
        a("ds_write_b128 v20, v[16:19]")
        a("s_waitcnt lgkmcnt(0)")
        a("s_barrier")
        a("s_branch prep_done")
        a.label("prep_cs0_%s" % tag)
        a("s_barrier")
        a("ds_read_b128 v[20:23], v20")
        a("s_waitcnt lgkmcnt(0)")
        for i in range(4):
            a("v_add_f32 v%d, v%d, v%d" % (16 + i, 16 + i, 20 + i))
        a("buffer_store_dwordx4 v[16:19], v5, s[24:27], s%d offen" % s_cdst)
        a("s_branch prep_done")

    a.label("prep_wgu")
    a("s_lshr_b32 s32, s2, 4")
    a("s_lshl_b32 s32, s32, 3")
    a("s_and_b32 s33, s2, 7")
    a("s_add_u32 s32, s32, s33")
    a("s_and_b32 s34, s32, 1")
    a("s_lshr_b32 s32, s32, 1")
    a("s_lshl_b32 s32, s32, 1")
    a("s_bfe_u32 s33, s2, 0x10003")
    a("s_add_u32 s32, s32, s33")
    a("s_cmp_eq_u32 s34, 0")
    a("s_cselect_b32 s44, s14, s16")
    a("s_cselect_b32 s45, s15, s17")
    srd(a, 28, 44, 0, 448 * 1792 * 2)
    a("s_lshl_b32 s35, s32, 6")
    stage(3584)
    trfrags(7, 2048, 7 * 2048)
    a("s_lshl_b32 s33, s32, 1")
    a("s_add_u32 s33, s33, s46")
    a("s_mul_i32 s39, s33, 14")
    a("s_mul_i32 s38, s47, 7")
    a("s_add_u32 s39, s39, s38")
    a("s_lshl_b32 s39, s39, 1")
    a("s_add_u32 s39, s39, s34")
    a("s_lshl_b32 s39, s39, 10")
    a("s_add_u32 s39, s39, 0x%x" % OFF_WGU)
    store_frags(7, 39, 2048)
    a("s_lshl_b32 s42, s33, 1")
    a("s_add_u32 s42, s42, s34")
    a("s_lshl_b32 s42, s42, 10")
    a("s_add_u32 s42, s42, 0x%x" % OFF_CGU)
    colsum(42, "gu")

    a.label("prep_wqkv")
    srd(a, 28, 6, 0, 448 * 1344 * 2)
    a("s_sub_u32 s32, s2, 112")
    a("s_lshr_b32 s33, s32, 4")
    a("s_and_b32 s34, s32, 15")
    a("s_mul_i32 s35, s33, 896")
    a("s_mul_i32 s38, s34, 56")
    a("s_add_u32 s35, s35, s38")
    stage(2688)
    trfrags(7, 2048, 7 * 2048)
    a("s_mul_i32 s38, s46, 4")
    a("s_sub_u32 s38, 16, s38")
    a("v_cmp_gt_u32 vcc, s38, v3")
    for i in range(28):
        a("v_cndmask_b32 v%d, 0, v%d, vcc" % (FR + i, FR + i))
    a("s_lshl_b32 s33, s33, 1")
    a("s_add_u32 s33, s33, s46")
    a("s_mul_i32 s39, s34, 14")
    a("s_mul_i32 s38, s47, 7")
    a("s_add_u32 s39, s39, s38")
    a("s_mul_i32 s39, s39, 6")
    a("s_add_u32 s39, s39, s33")
    a("s_lshl_b32 s39, s39, 10")
    a("s_add_u32 s39, s39, 0x%x" % OFF_WQKV)
    store_frags(7, 39, 6 * 1024)
    a("s_mul_i32 s42, s34, 6")
    a("s_add_u32 s42, s42, s33")
    a("s_lshl_b32 s42, s42, 10")
    a("s_add_u32 s42, s42, 0x%x" % OFF_CQKV)
    colsum(42, "qkv")

    a.label("prep_wd")
    srd(a, 28, 18, 0, 1792 * 448 * 2)
    a("s_sub_u32 s32, s2, 160")
    a("s_and_b32 s34, s32, 3")
    a("s_lshr_b32 s32, s32, 2")
    a("s_mul_i32 s35, s34, %d" % (448 * 896))
    a("s_lshl_b32 s38, s32, 6")
    a("s_add_u32 s35, s35, s38")
    stage(896)
    trfrags(7, 2048, 7 * 2048)
    a("s_lshl_b32 s33, s32, 1")
    a("s_add_u32 s33, s33, s46")
    a("s_mul_i32 s39, s33, 56")
    a("s_mul_i32 s38, s34, 14")
    a("s_add_u32 s39, s39, s38")
    a("s_mul_i32 s38, s47, 7")
    a("s_add_u32 s39, s39, s38")
    a("s_lshl_b32 s39, s39, 10")
    a("s_add_u32 s39, s39, 0x%x" % OFF_WD)
    store_frags(7, 39, 1024)
    a("s_branch prep_done")

    a.label("prep_wo")
    srd(a, 28, 10, 0, 448 * 448 * 2)
    a("s_sub_u32 s32, s2, 216")
    a("s_lshl_b32 s35, s32, 6")
    stage(896)
    trfrags(8, 28 * 64, 8 * 28 * 64)
    for j in range(8):
        a("v_cndmask_b32 v%d, v%d, 0, s[40:41]" % (FR + 4 * j + 2, FR + 4 * j + 2))
        a("v_cndmask_b32 v%d, v%d, 0, s[40:41]" % (FR + 4 * j + 3, FR + 4 * j + 3))
    a("s_lshl_b32 s33, s32, 1")
    a("s_add_u32 s33, s33, s46")
    a("s_mul_i32 s39, s47, %d" % (8 * 28))
    a("s_add_u32 s39, s39, s33")
    a("s_lshl_b32 s39, s39, 10")
    a("s_add_u32 s39, s39, 0x%x" % OFF_WO)
    store_frags(8, 39, 28 * 1024)
    a("s_branch prep_done")

    RAW = 100
    a.label("prep_wphi")
    srd(a, 28, 8, 0, 16 * 28 * 28 * 2)
    a("s_mul_i32 s35, s3, %d" % (4 * 1568))
    a("v_lshlrev_b32 v16, 1, v3")
    a("v_mul_u32_u24 v17, %d, v4" % (4 * 56))
    a("v_add_u32 v16, v16, v17")
    a("v_add_u32 v16, s35, v16")
    a("v_cndmask_b32 v18, v16, v6, s[40:41]")
    a("v_add_u32 v19, 32, v16")
    a("v_cmp_gt_u32 vcc, 12, v3")
    a("v_cndmask_b32 v19, v6, v19, vcc")
    a("v_cndmask_b32 v20, v19, v6, s[40:41]")
    for hh in range(4):
        for ft in range(2):
            vo = [16] * 4 + [18] * 4 if ft == 0 else [19] * 4 + [20] * 4
            for j in range(8):
                a("s_mov_b32 s36, 0x%x" % (hh * 1568 + kmapD_slot(j) * 56))
                a("buffer_load_ushort v%d, v%d, s[28:31], s36 offen" % (RAW + (hh * 2 + ft) * 8 + j, vo[j]))
    a("s_lshl_b32 s39, s3, 13")
    a("s_add_u32 s39, s39, 0x%x" % OFF_WPHI)
    a("s_waitcnt vmcnt(0)")
    for f in range(8):
        for i in range(4):
            a("v_lshl_or_b32 v%d, v%d, 16, v%d" % (FR + f * 4 + i, RAW + f * 8 + 2 * i + 1, RAW + f * 8 + 2 * i))
    store_frags(8, 39, 1024)
    a("s_branch prep_done")

    a.label("prep_zero")
    a("s_sub_u32 s32, s2, 263")
    a("s_lshl_b32 s39, s32, 16")
    a("s_add_u32 s39, s39, 0x%x" % OFF_KV)
    a("v_lshlrev_b32 v16, 4, v0")
    for i in range(4):
        a("v_mov_b32 v%d, 0" % (20 + i))
    for i in range(16):
        a("s_add_u32 s37, s39, 0x%x" % (i * 4096))
        a("buffer_store_dwordx4 v[20:23], v16, s[24:27], s37 offen")
    a("s_lshl_b32 s37, s32, 14")
    a("s_add_u32 s37, s37, 0x%x" % OFF_FLAG)
    for i in range(4):
        a("buffer_store_dwordx4 v[20:23], v16, s[24:27], s37 offen")
        a("s_add_u32 s37, s37, 4096")
    a("s_branch prep_done")

    a.label("prep_x")
    srd(a, 28, 4, 0, SZ_X)
    a("s_sub_u32 s32, s2, 230")
    a("s_lshl_b32 s32, s32, 2")
    a("s_add_u32 s32, s32, s3")
    a("s_mul_i32 s35, s32, 14336")
    a("s_mul_i32 s37, s3, 14336")
    for c in range(4):
        n = min(4, 14 - 4 * c)
        a("s_add_u32 s36, s37, %d" % (c * 4096))
        a("s_mov_b32 m0, s36")
        a("s_add_u32 s38, s35, %d" % (c * 4096))
        for i in range(n):
            a("buffer_load_dwordx4 v5, s[28:31], s38 offen offset:%d lds" % (i * 1024))
    a("v_mul_u32_u24 v16, 896, v3")
    a("v_lshlrev_b32 v17, 3, v4")
    a("v_add3_u32 v16, v16, v17, s37")
    a("s_mul_i32 s39, s32, %d" % (14 * 1024))
    a("s_add_u32 s39, s39, 0x%x" % OFF_X0)
    for i in range(4):
        a("v_mov_b32 v%d, 0" % (12 + i))
    a("s_waitcnt vmcnt(0)")
    for ks in range(14):
        a("ds_read_b64 %s, v16 offset:%d" % (vr(FR + 4 * ks, 2), ks * 64))
        a("ds_read_b64 %s, v16 offset:%d" % (vr(FR + 4 * ks + 2, 2), ks * 64 + 32))
    a("s_waitcnt lgkmcnt(0)")
    store_frags(14, 39, 1024)
    for ks in range(14):
        for r in range(4):
            x = FR + 4 * ks + r
            a("v_dot2c_f32_bf16 v%d, v%d, v8" % (12 + 2 * (r & 1), x))
            a("v_dot2c_f32_bf16 v%d, v%d, v%d" % (13 + 2 * (r & 1), x, x))
    a("v_add_f32 v12, v12, v14")
    a("v_add_f32 v13, v13, v15")
    butterfly(a, [12, 13], [14, 15], "v_add_f32")
    a("v_mov_b32 v14, 0")
    a("v_mov_b32 v15, 0")
    a("v_cmp_eq_u32 vcc, 0, v4")
    a("v_cndmask_b32 v12, 0, v12, vcc")
    a("v_cndmask_b32 v13, 0, v13, vcc")
    stats_addr(a, 18, 19, 3, 4, 17)
    a("s_mul_i32 s39, s32, %d" % (14 * 128))
    a("s_add_u32 s39, s39, 0x%x" % OFF_ST0)
    a("buffer_store_dwordx2 v[12:13], v18, s[24:27], s39 offen")
    a("buffer_store_dwordx2 v[14:15], v18, s[24:27], s39 offen offset:512")
    a("buffer_store_dwordx2 v[14:15], v18, s[24:27], s39 offen offset:1024")
    a("buffer_store_dwordx2 v[14:15], v19, s[24:27], s39 offen offset:1536")
    a.label("prep_done")
    if STAMP:
        _nst[0] = 4
        stamp(a)
        a("s_cmp_ge_u32 s2, %d" % NPREP)
        a("s_cbranch_scc1 prep_done2")
        a("s_mov_b32 s6, s20")
        a("s_mov_b32 s7, s21")
        stamp_flush(a, 0, 6)
        a.label("prep_done2")
    a("s_endpgm")
    kdefs[name] = (168, 64, 0)


def stubs(a, base, params, body):
    for layer, p in enumerate(params):
        kbegin(a, "%sl%d_kernel" % (base, layer))
        for r, v in p.items():
            a("s_mov_b32 s%d, 0x%x" % (r, v))
        a("s_branch %s" % body)
    a.raw(".p2align 6")
    a.label(body)


def gen_k1(a):
    name = "k1"
    stubs(a, "mega", [{52: OFF_X0, 98: OFF_ST0, 53: OFF_FLAG, 54: OFF_KV, 55: 0, 97: 0,
                       80: OFF_X1, 81: OFF_ST1, 82: OFF_H, 83: OFF_OF}], "k1_body")
    vm = VM(a)
    LDS_RED = 86016
    a("s_cmp_ge_u32 s2, 256")
    a("s_cbranch_scc1 kb_done")
    mstamp(a, 0)
    a("s_load_dwordx2 s[4:5], s[0:1], 64")
    a("s_load_dwordx2 s[6:7], s[0:1], 80")
    a("v_and_b32 v1, 63, v0")
    a("v_lshrrev_b32 v2, 6, v0")
    a("v_readfirstlane_b32 s3, v2")
    a("v_and_b32 v3, 15, v1")
    a("v_lshrrev_b32 v4, 4, v1")
    a("v_lshlrev_b32 v5, 4, v1")
    a("v_cmp_eq_u32 s[40:41], 3, v4")
    stats_addr(a, 6, 7, 3, 4, 8)
    a("s_and_b32 s20, s2, 7")
    a("s_lshr_b32 s21, s2, 3")
    a("s_and_b32 s22, s20, 3")
    a("s_lshl_b32 s22, s22, 2")
    a("s_and_b32 s23, s21, 3")
    a("s_add_u32 s22, s22, s23")
    a("s_lshr_b32 s23, s20, 2")
    a("s_lshl_b32 s23, s23, 3")
    a("s_lshr_b32 s24, s21, 2")
    a("s_add_u32 s23, s23, s24")
    a("s_lshl_b32 s24, s22, 3")
    a("s_add_u32 s24, s24, s3")
    a("s_mul_i32 s25, s24, %d" % (14 * 1024))
    a("s_add_u32 s25, s25, s52")
    for c in range(4):
        a("s_add_u32 s%d, s25, %d" % (44 + c, c * 4096))
    a("s_mul_i32 s26, s23, 86016")
    a("s_add_u32 s26, s26, 0x%x" % OFF_WQKV)
    a("s_lshl_b32 s27, s3, 10")
    a("s_add_u32 s26, s26, s27")
    a("s_mul_i32 s30, s24, %d" % (14 * 128))
    a("s_add_u32 s30, s30, s98")
    a("s_mul_i32 s35, s23, 6144")
    a("s_add_u32 s35, s35, 0x%x" % OFF_CQKV)
    a("s_add_u32 s36, s35, 4096")
    a("s_lshl_b32 s32, s23, 11")
    a("s_add_u32 s32, s32, 0x%x" % OFF_WPHI)
    a("s_waitcnt lgkmcnt(0)")
    srd(a, 8, 6, 0, WS_TOTAL)
    srd(a, 16, 4, 0, SZ_X)
    X = 200

    def xload(ks):
        vm.issue("x%d" % ks, "buffer_load_dwordx4 %s, v5, s[8:11], s%d offen offset:%d sc1" % (vr(X + ks * 4, 4), 44 + ks // 4, (ks % 4) * 1024))

    def dma(i, tag):
        a("s_mov_b32 m0, s27")
        vm.issue(tag, "buffer_load_dwordx4 v5, s[8:11], s26 offen lds")
        if i < 10:
            a("s_add_u32 s26, s26, 8192")
            a("s_add_u32 s27, s27, 8192")

    ST = 156
    CS = 112
    WP = 136
    for i in range(11):
        dma(i, "dmaA")
    for ct in range(6):
        vm.issue("cs", "buffer_load_dwordx4 %s, v5, s[8:11], s%d offen offset:%d" % (vr(CS + 4 * ct, 4), 35 if ct < 4 else 36, (ct % 4) * 1024))
    for ft in range(2):
        vm.issue("cs", "buffer_load_dwordx4 %s, v5, s[8:11], s32 offen offset:%d" % (vr(WP + 4 * ft, 4), ft * 1024))
    a("s_cmp_eq_u32 s97, 0")
    a("s_cbranch_scc1 k1_nowait")
    a("s_lshl_b32 s49, s22, 8")
    a("s_add_u32 s49, s49, s97")
    wait_flag(a, 49, 14, "c")
    a.raw("k1_nowait:")
    a.hist = []
    for i in range(7):
        xload(i)
    late = []
    for i in range(7, 14):
        late.append(lambda i=i: xload(i))
    late2 = []
    late2.append(lambda: stats_load(vm, "st", ST, 6, 7, 8, 30))
    ID = 144
    VL = 150
    MB = 152
    RI = 154
    a("v_mov_b32 v%d, 0x%x" % (VL, LOG2E))
    for i in (0, 1, 4, 5):
        a("v_mov_b32 v%d, 0" % (ID + i))
    a("v_lshrrev_b32 v8, 2, v3")
    a("v_cmp_eq_u32 vcc, v8, v4")
    a("v_and_b32 v9, 3, v3")
    a("v_and_b32 v10, 1, v9")
    a("v_lshlrev_b32 v10, 4, v10")
    a("v_mov_b32 v11, 0x3f80")
    a("v_lshlrev_b32 v11, v10, v11")
    a("v_cndmask_b32 v11, 0, v11, vcc")
    a("v_cmp_gt_u32 vcc, 2, v9")
    a("v_cndmask_b32 v%d, 0, v11, vcc" % (ID + 2))
    a("v_cndmask_b32 v%d, v11, 0, vcc" % (ID + 3))
    a("v_add_u32 v8, 43008, v5")
    WB = 16
    ACC = 64

    def wread(ks):
        dst = WB + (ks & 1) * 24
        for ct in range(6):
            off = (ks * 6 + ct) * 1024
            if ks < 7:
                a("ds_read_b128 %s, v5 offset:%d" % (vr(dst + ct * 4, 4), off))
            else:
                a("ds_read_b128 %s, v8 offset:%d" % (vr(dst + ct * 4, 4), off - 43008))

    def mm(ks, q, nq):
        cur = WB + (ks & 1) * 24
        n = 0
        for ct in (2, 3, 4, 5, 0, 1):
            d = vr(ACC + ct * 4, 4)
            a("%s %s, %s, %s, %s" % (MF, d, vr(cur + ct * 4, 4), vr(X + ks * 4, 4), "0" if ks == 0 else d))
            if n < nq and q and ct % 2 == 1:
                q.pop(0)()
                n += 1

    vm.wait("x0")
    a("s_barrier")
    wread(0)
    for ks in range(14):
        if ks < 13:
            wread(ks + 1)
            vm.wait("x%d" % ks, "lgkmcnt(6)")
        else:
            vm.wait("x%d" % ks, "lgkmcnt(0)")
        if late:
            mm(ks, late, 2)
        else:
            mm(ks, late2, 2)
    assert not late2
    stamp(a)

    def ln_apply(ct, dst2):
        b = ACC + ct * 4
        for r in range(4):
            a("v_fma_f32 v%d, -v%d, v%d, v%d" % (b + r, MB, CS + ct * 4 + r, b + r))
        for r in range(4):
            a("v_mul_f32 v%d, v%d, v%d" % (b + r, b + r, RI))
        a("v_cvt_pk_bf16_f32 v%d, v%d, v%d" % (dst2, b, b + 1))
        a("v_cvt_pk_bf16_f32 v%d, v%d, v%d" % (dst2 + 1, b + 2, b + 3))

    mstamp(a, 1)
    vm.wait("st")
    stats_finish(a, ST, MB, RI, 9, 10)
    KF, VF, QF = 16, 20, 24
    a("v_mov_b32 v9, 0x3f80")
    ln_apply(2, KF)
    ln_apply(3, KF + 2)
    PK = 164
    PQ = 172
    for ft in range(2):
        a("%s %s, %s, %s, 0" % (MF, vr(PK + ft * 4, 4), vr(WP + 4 * ft, 4), vr(KF, 4)))
    ln_apply(4, VF)
    ln_apply(5, VF + 2)
    a("v_cndmask_b32 v%d, v%d, v9, s[40:41]" % (VF + 2, VF + 2))
    ln_apply(0, QF)
    ln_apply(1, QF + 2)
    for ft in range(2):
        a("%s %s, %s, %s, 0" % (MF, vr(PQ + ft * 4, 4), vr(WP + 4 * ft, 4), vr(QF, 4)))
    PH = 28
    TT = list(range(180, 200))
    PKT = 36
    VT = 52
    for i in range(6):
        a("v_mov_b32 v%d, 0" % (PKT + 4 * i + 2))
        a("v_mov_b32 v%d, 0" % (PKT + 4 * i + 3))
    softmax_pair(a, [PK + i for i in range(8)], TT, PH, PH + 4, "s[40:41]", VL)
    TD = 64
    srcs = []
    for b in range(2):
        for t in range(2):
            srcs.append((PH + 4 * b, t, PKT + (2 * b + t) * 4))
    for t in range(2):
        srcs.append((VF, t, VT + t * 4))
    for i, (src, t, dst) in enumerate(srcs):
        idr = vr(ID + 2, 4) if t == 0 else vr(ID, 4)
        a("%s %s, %s, %s, 0" % (MF, vr(TD + 4 * i, 4), vr(src, 4), idr))
    for i, (src, t, dst) in enumerate(srcs):
        a("v_cvt_pk_bf16_f32 v%d, v%d, v%d" % (dst, TD + 4 * i, TD + 4 * i + 1))
        a("v_cvt_pk_bf16_f32 v%d, v%d, v%d" % (dst + 1, TD + 4 * i + 2, TD + 4 * i + 3))
    KVR = 64
    for ft in range(4):
        for dt in range(2):
            a("%s %s, %s, %s, 0" % (MF, vr(KVR + (ft * 2 + dt) * 4, 4), vr(PKT + 4 * ft, 4), vr(VT + 4 * dt, 4)))
    stamp(a)
    a("s_lshl_b32 s33, s3, 13")
    a("s_add_u32 s33, s33, %d" % LDS_RED)
    a("v_add_u32 v9, s33, v5")
    for t in range(8):
        a("ds_write_b128 v9, %s offset:%d" % (vr(KVR + 4 * t, 4), t * 1024))
    a("s_waitcnt lgkmcnt(0)")
    a("s_barrier")
    RD = 64
    a("s_lshl_b32 s33, s3, 10")
    a("s_add_u32 s33, s33, %d" % LDS_RED)
    a("v_lshlrev_b32 v9, 2, v1")
    a("v_add_u32 v10, s33, v9")
    for w in range(8):
        for i in range(4):
            a("ds_read_b32 v%d, v10 offset:%d" % (RD + w * 4 + i, w * 8192 + i * 256))
    a("s_lshl_b32 s33, s23, 13")
    a("s_add_u32 s33, s33, s54")
    a("s_lshl_b32 s34, s3, 10")
    a("s_add_u32 s33, s33, s34")
    PHQ = 16
    a("s_waitcnt lgkmcnt(0)")
    for step in (16, 8, 4):
        for d in range(RD, RD + step):
            a("v_add_f32 v%d, v%d, v%d" % (d, d, d + step))
    for r in range(4):
        a("buffer_atomic_add_f32 v%d, v9, s[8:11], s33 offen offset:%d" % (RD + r, r * 256))
    softmax_pair(a, [PQ + i for i in range(8)], TT, PHQ, PHQ + 4, "s[40:41]", VL)
    a("s_lshl_b32 s34, s23, 8")
    a("s_add_u32 s34, s34, s53")
    a("s_add_u32 s34, s34, 16384")
    a("s_add_u32 s35, s53, 20480")
    a("s_and_b32 s49, s2, 15")
    a("s_lshl_b32 s49, s49, 8")
    a("s_add_u32 s49, s49, s35")
    a("s_waitcnt vmcnt(0)")
    mstamp(a, 2)
    a("s_barrier")
    a("s_cmp_lg_u32 s3, 0")
    a("s_cbranch_scc1 kv_pub_skip")
    a("v_mov_b32 v1, 0")
    a("v_mov_b32 v2, 1")
    a("s_mov_b64 s[58:59], exec")
    a("s_mov_b64 exec, 1")
    a("buffer_atomic_add v2, v1, s[8:11], s34 offen sc0 sc1")
    a("s_waitcnt vmcnt(0)")
    a("v_readfirstlane_b32 s57, v2")
    a("s_mov_b64 exec, s[58:59]")
    a("v_and_b32 v1, 63, v0")
    a("s_cmp_lg_u32 s57, 15")
    a("s_cbranch_scc1 kv_pub_skip")
    a("v_lshlrev_b32 v9, 8, v1")
    a("v_mov_b32 v2, 1")
    a("s_mov_b64 exec, 0xffff")
    a("buffer_atomic_add v2, v9, s[8:11], s35 offen sc1")
    a("s_mov_b64 exec, s[58:59]")
    a.raw("kv_pub_skip:")
    a.hist = []
    a("s_nop 4")
    wait_flag(a, 49, 16, "kv")
    mstamp(a, 3)
    KB_ = 64
    a("s_lshl_b32 s28, s23, 13")
    a("s_add_u32 s28, s28, s54")
    a("s_add_u32 s29, s28, 4096")
    for b in range(2):
        for dt in range(2):
            for hf in range(2):
                a("buffer_load_dwordx4 %s, v5, s[8:11], s%d offen offset:%d sc1" % (vr(KB_ + (b * 2 + dt) * 8 + hf * 4, 4), 28 + b, (hf * 2 + dt) * 1024))
    a("s_lshl_b32 s33, s24, 4")
    a("s_add_u32 s33, s33, s23")
    a("s_lshl_b32 s33, s33, 10")
    a("s_add_u32 s33, s33, s83")
    a("s_lshl_b32 s50, s22, 8")
    a("s_add_u32 s50, s50, s53")
    a("s_add_u32 s50, s50, 12288")
    a("s_waitcnt vmcnt(0)")
    for i in range(16):
        a("v_cvt_pk_bf16_f32 v%d, v%d, v%d" % (KB_ + i, KB_ + 2 * i, KB_ + 2 * i + 1))
    nb = KB_ + 16
    for dt in range(2):
        for b in range(2):
            d = vr(nb + dt * 4, 4)
            a("%s %s, %s, %s, %s" % (MF, d, vr(KB_ + (b * 2 + dt) * 4, 4), vr(PHQ + 4 * b, 4), "0" if b == 0 else d))
    DN = KB_ + 24
    a("v_cndmask_b32 v%d, 0, v%d, s[40:41]" % (DN, nb + 4))
    butterfly(a, [DN], [DN + 1], "v_add_f32")
    a("v_add_f32 v%d, 0x358637bd, v%d" % (DN, DN))
    a("v_rcp_f32 v%d, v%d" % (DN, DN))
    for i in range(8):
        a("v_mul_f32 v%d, v%d, v%d" % (nb + i, nb + i, DN))
    for i in range(4):
        a("v_cvt_pk_bf16_f32 v%d, v%d, v%d" % (DN + 4 + i, nb + 2 * i, nb + 2 * i + 1))
    vm.issue("of", "buffer_store_dwordx4 %s, v5, s[8:11], s33 offen sc1" % vr(DN + 4, 4))
    publish(a, vm, "of", 50, "o")
    mstamp(a, 4)
    a("s_cmp_ge_u32 s2, 224")
    a("s_cbranch_scc1 kb_tail")
    a("s_branch kb_body")
    kdefs["megal0_kernel"] = (256, 100, 0)


def tile_map(a):
    a("s_and_b32 s20, s2, 7")
    a("s_lshr_b32 s21, s2, 3")
    a("s_lshl_b32 s22, s20, 2")
    a("s_and_b32 s23, s21, 3")
    a("s_add_u32 s22, s22, s23")
    a("s_lshr_b32 s23, s21, 2")
    a("s_lshr_b32 s24, s3, 1")
    a("s_lshl_b32 s25, s22, 2")
    a("s_add_u32 s24, s24, s25")
    a("s_and_b32 s25, s3, 1")
    a("s_lshl_b32 s26, s23, 1")
    a("s_add_u32 s25, s25, s26")
    a("s_mul_i32 s26, s24, 14")
    a("s_add_u32 s26, s26, s25")


SC = " sc1"


def reduce_store(a, vm, ACC, RES, name, off_out, off_st, final):
    a("s_lshl_b32 s33, s3, 14")
    a("v_add_u32 v9, s33, v5")
    for t in range(16):
        a("ds_write_b128 v9, %s offset:%d" % (vr(ACC + 4 * t, 4), t * 1024))
    a("s_lshl_b32 s33, s3, 11")
    a("v_add_u32 v9, s33, v5")
    a("v_add_u32 v10, 0x10000, v9")
    if final:
        a("s_lshl_b32 s34, s24, 4")
        a("v_add_u32 v7, s34, v3")
        a("v_mul_u32_u24 v7, 896, v7")
        a("s_lshl_b32 s34, s25, 6")
        a("v_lshlrev_b32 v11, 3, v4")
        a("v_add3_u32 v7, v7, v11, s34")
    a("s_lshl_b32 s34, s26, 10")
    a("s_add_u32 s34, s34, %s" % (off_out if isinstance(off_out, str) else "0x%x" % off_out))
    a("s_lshl_b32 s35, s26, 7")
    a("s_add_u32 s35, s35, %s" % (off_st if isinstance(off_st, str) else "0x%x" % off_st))
    a("v_lshlrev_b32 v8, 3, v3")
    a("v_mov_b32 v11, 0x%x" % ONES_BF)
    a("s_waitcnt lgkmcnt(0)")
    a("s_barrier")
    for w in range(8):
        for t in range(2):
            base = 9 if w < 4 else 10
            a("ds_read_b128 %s, v%d offset:%d" % (vr(ACC + (w * 2 + t) * 4, 4), base, (w & 3) * 16384 + t * 1024))
    a("s_waitcnt lgkmcnt(8)")
    for base in range(0, 16, 8):
        for i in range(8):
            d = ACC + base + i
            a("v_add_f32 v%d, v%d, v%d" % (d, d, d + 16))
    a("s_waitcnt lgkmcnt(0)")
    for base in range(32, 48, 8):
        for i in range(8):
            d = ACC + base + i
            a("v_add_f32 v%d, v%d, v%d" % (d, d, d + 16))
    for i in range(8):
        a("v_add_f32 v%d, v%d, v%d" % (ACC + i, ACC + i, ACC + 8 + i))
        a("v_add_f32 v%d, v%d, v%d" % (ACC + 32 + i, ACC + 32 + i, ACC + 40 + i))
    for i in range(8):
        a("v_add_f32 v%d, v%d, v%d" % (ACC + i, ACC + i, ACC + 32 + i))
    vm.wait("res")
    o = ACC + 8
    e = ACC + 16
    for i in range(4):
        a("v_cvt_pk_bf16_f32 v%d, v%d, v%d" % (o + i, ACC + 2 * i, ACC + 2 * i + 1))
    for i in range(4):
        a("v_lshlrev_b32 v%d, 16, v%d" % (ACC + 2 * i, o + i))
        a("v_and_b32 v%d, 0xffff0000, v%d" % (ACC + 2 * i + 1, o + i))
        a("v_lshlrev_b32 v%d, 16, v%d" % (e + 2 * i, RES + i))
        a("v_and_b32 v%d, 0xffff0000, v%d" % (e + 2 * i + 1, RES + i))
    for i in range(8):
        a("v_add_f32 v%d, v%d, v%d" % (ACC + i, ACC + i, e + i))
    for i in range(4):
        a("v_cvt_pk_bf16_f32 v%d, v%d, v%d" % (o + i, ACC + 2 * i, ACC + 2 * i + 1))
    if final:
        a("s_cmp_eq_u32 s55, 0")
        a("s_cbranch_scc1 %s_notfinal" % name)
        a("buffer_store_dwordx2 %s, v7, s[16:19], 0 offen" % vr(o, 2))
        a("buffer_store_dwordx2 %s, v7, s[16:19], 0 offen offset:32" % vr(o + 2, 2))
        a("s_branch %s_fin" % name)
        a.label("%s_notfinal" % name)
    sc = SC
    vm.issue("out", "buffer_store_dwordx4 %s, v5, s[8:11], s34 offen%s" % (vr(o, 4), sc))
    s = ACC + 24
    a("v_mov_b32 v%d, 0" % s)
    a("v_mov_b32 v%d, 0" % (s + 1))
    for i in range(4):
        a("v_dot2c_f32_bf16 v%d, v%d, v11" % (s, o + i))
        a("v_dot2c_f32_bf16 v%d, v%d, v%d" % (s + 1, o + i, o + i))
    butterfly(a, [s, s + 1], [s + 2, s + 3], "v_add_f32")
    vm.issue("out", "buffer_store_dwordx2 %s, v8, s[8:11], s35 offen%s" % (vr(s, 2), sc))
    if final:
        a.label("%s_fin" % name)


def publish(a, vm, tag, s_pub, uid):
    vm.wait(tag)
    stamp(a)
    a("s_barrier")
    a("s_cmp_lg_u32 s3, 0")
    a("s_cbranch_scc1 pub_skip_%s" % uid)
    a("v_mov_b32 v1, 0")
    a("v_mov_b32 v2, 1")
    a("s_mov_b64 s[58:59], exec")
    a("s_mov_b64 exec, 1")
    a("buffer_atomic_add v2, v1, s[8:11], s%d offen sc1" % s_pub)
    a("s_mov_b64 exec, s[58:59]")
    a("v_and_b32 v1, 63, v0")
    a.raw("pub_skip_%s:" % uid)
    a.hist = []
    a("s_nop 4")


def wait_flag(a, s_wait, count, uid):
    a("s_cmp_lg_u32 s3, 7")
    a("s_cbranch_scc1 sync_skip_%s" % uid)
    a("v_mov_b32 v1, 0")
    a("s_mov_b64 s[58:59], exec")
    a("s_mov_b64 exec, 1")
    a("s_mov_b32 s56, 0")
    a.raw("sync_poll_%s:" % uid)
    a("buffer_load_dword v2, v1, s[8:11], s%d offen sc1" % s_wait)
    a("s_waitcnt vmcnt(0)")
    a("v_readfirstlane_b32 s57, v2")
    a("s_cmp_ge_u32 s57, %d" % count)
    a("s_cbranch_scc1 sync_done_%s" % uid)
    if int(os.environ.get("SLP", "1")):
        a("s_sleep %d" % int(os.environ.get("SLP", "1")))
    a("s_add_u32 s56, s56, 1")
    a("s_cmp_lt_u32 s56, 0x8000")
    a("s_cbranch_scc1 sync_poll_%s" % uid)
    a.raw("sync_done_%s:" % uid)
    a("s_mov_b64 exec, s[58:59]")
    a("v_and_b32 v1, 63, v0")
    a.raw("sync_skip_%s:" % uid)
    a.hist = []
    a("s_nop 4")
    a("s_barrier")


def gen_kb(a):
    name = "kb"
    a.label("kb_body")
    vm = VM(a)
    tile_map(a)
    ACC = 16
    RES = 12
    WO = 80
    OFR = 112
    a("s_lshl_b32 s27, s3, 1")
    a("s_mul_i32 s30, s27, 28")
    a("s_lshl_b32 s31, s23, 2")
    a("s_add_u32 s30, s30, s31")
    a("s_lshl_b32 s30, s30, 10")
    a("s_add_u32 s30, s30, 0x%x" % OFF_WO)
    a("s_add_u32 s31, s30, %d" % (28 * 1024))
    for hh in range(2):
        for ct in range(4):
            vm.issue("wo", "buffer_load_dwordx4 %s, v5, s[8:11], s%d offen offset:%d" % (vr(WO + (hh * 4 + ct) * 4, 4), 30 + hh, ct * 1024))
    a("s_lshl_b32 s30, s26, 10")
    a("s_add_u32 s30, s30, s52")
    vm.issue("res", "buffer_load_dwordx4 v[12:15], v5, s[8:11], s30 offen sc1")
    a("s_lshr_b32 s49, s22, 1")
    a("s_lshl_b32 s49, s49, 8")
    a("s_add_u32 s49, s49, s53")
    a("s_add_u32 s49, s49, 12288")
    wait_flag(a, 49, 16, "o")
    mstamp(a, 5)
    a("s_lshl_b32 s30, s22, 6")
    a("s_add_u32 s30, s30, s27")
    a("s_lshl_b32 s30, s30, 10")
    a("s_add_u32 s30, s30, s83")
    for rt in range(4):
        a("s_add_u32 s31, s30, %d" % (rt * 16384))
        for hh in range(2):
            vm.issue("o%d" % rt, "buffer_load_dwordx4 %s, v5, s[8:11], s31 offen offset:%d sc1" % (vr(OFR + (hh * 4 + rt) * 4, 4), hh * 1024))
    for rt in range(4):
        vm.wait("o%d" % rt)
        for hh in range(2):
            for ct in range(4):
                d = vr(ACC + (rt * 4 + ct) * 4, 4)
                a("%s %s, %s, %s, %s" % (MF, d, vr(WO + (hh * 4 + ct) * 4, 4), vr(OFR + (hh * 4 + rt) * 4, 4), "0" if hh == 0 else d))
    stamp(a)
    reduce_store(a, vm, ACC, RES, "kbA", "s80", "s81", False)
    a("s_lshr_b32 s50, s22, 1")
    a("s_lshl_b32 s50, s50, 8")
    a("s_add_u32 s50, s50, s53")
    a("s_add_u32 s51, s50, 4096")
    publish(a, vm, "out", 50, "a")
    mstamp(a, 6)
    LDS_ST = 112 * 1024
    LDS_HX = 116 * 1024
    a("s_and_b32 s22, s20, 3")
    a("s_lshl_b32 s22, s22, 2")
    a("s_and_b32 s23, s21, 3")
    a("s_add_u32 s22, s22, s23")
    a("s_lshr_b32 s23, s20, 2")
    a("s_mul_i32 s23, s23, 7")
    a("s_lshr_b32 s24, s21, 2")
    a("s_add_u32 s23, s23, s24")
    a("s_lshl_b32 s23, s23, 3")
    a("s_add_u32 s23, s23, s3")
    a("s_lshl_b32 s24, s22, 3")
    a("s_add_u32 s24, s24, s3")
    a("s_mul_i32 s26, s3, %d" % (14 * 1024))
    a("s_mul_i32 s27, s24, %d" % (14 * 1024))
    a("s_add_u32 s27, s27, s80")
    W = 136
    ACC = 8
    XB = 72
    CS = 248
    a("s_mul_i32 s29, s23, %d" % (28 * 1024))
    a("s_add_u32 s29, s29, 0x%x" % OFF_WGU)
    for c in range(7):
        a("s_add_u32 s%d, s29, %d" % (42 + c, c * 4096))
    def wload(ks):
        for mat in range(2):
            vm.issue("w%d" % ks, "buffer_load_dwordx4 %s, v5, s[8:11], s%d offen offset:%d" % (vr(W + (ks * 2 + mat) * 4, 4), 42 + ks // 2, ((ks & 1) * 2 + mat) * 1024))

    NPRE = int(os.environ.get('NPRE', '3'))
    for ks in range(NPRE):
        wload(ks)
    a("s_lshl_b32 s31, s23, 11")
    a("s_add_u32 s31, s31, 0x%x" % OFF_CGU)
    vm.issue("cs", "buffer_load_dwordx4 v[248:251], v5, s[8:11], s31 offen")
    vm.issue("cs", "buffer_load_dwordx4 v[252:255], v5, s[8:11], s31 offen offset:1024")
    a("s_lshr_b32 s38, s21, 2")
    a("s_mul_i32 s28, s38, 224")
    a("s_mul_i32 s39, s3, 7")
    a("s_add_u32 s28, s28, s39")
    a("s_lshl_b32 s28, s28, 10")
    a("s_add_u32 s28, s28, 0x%x" % OFF_WD)
    for c in range(4):
        a("s_add_u32 s%d, s28, %d" % (84 + c, c * 56 * 1024))
        a("s_add_u32 s%d, s28, %d" % (88 + c, c * 56 * 1024 + 4096))
    WD = 136

    def wdload(j):
        i, c = j // 4, j % 4
        vm.issue("wd", "buffer_load_dwordx4 %s, v5, s[8:11], s%d offen offset:%d" % (vr(WD + j * 4, 4), (84 if i < 4 else 88) + c, (i % 4) * 1024))

    a("s_lshl_b32 s49, s22, 8")
    a("s_add_u32 s49, s49, s53")
    stamp(a)
    wait_flag(a, 49, 14, "a")
    stamp(a)
    stats_addr(a, 6, 7, 3, 4, 2)

    def xdma(lo, hi, tag):
        for c0 in range(lo, hi, 4):
            n = min(4, hi - c0)
            a("s_add_u32 s28, s26, %d" % (c0 * 1024))
            a("s_mov_b32 m0, s28")
            a("s_add_u32 s29, s27, %d" % (c0 * 1024))
            for i in range(n):
                vm.issue(tag, "buffer_load_dwordx4 v5, s[8:11], s29 offen offset:%d%s lds" % (i * 1024, SC))

    S = ACC
    xdma(0, 7, "dmaA")
    a("s_mul_i32 s30, s24, %d" % (14 * 128))
    a("s_add_u32 s30, s30, s81")
    for i in range(4):
        vm.issue("st", "buffer_load_dwordx2 %s, v%d, s[8:11], s30 offen offset:%d%s" % (vr(S + 2 * i, 2), 6 if i < 3 else 7, i * 512, SC))
    xdma(7, 14, "dmaB")
    a("v_add_u32 v6, 57344, v5")
    vm.wait("st")
    stats_finish(a, S, S + 10, S + 11, S + 8, S + 9)
    a("s_lshl_b32 s33, s3, 7")
    a("s_add_u32 s33, s33, %d" % LDS_ST)
    a("v_lshlrev_b32 v2, 3, v3")
    a("v_add_u32 v2, s33, v2")
    a("ds_write_b64 v2, %s" % vr(S + 10, 2))
    a("s_waitcnt lgkmcnt(0)")
    a("s_barrier")
    mstamp(a, 7)

    def xfrag(dst, rt, ks):
        off = (rt * 14 + ks) * 1024
        if off < 57344:
            a("ds_read_b128 %s, v5 offset:%d" % (vr(dst, 4), off))
        else:
            a("ds_read_b128 %s, v6 offset:%d" % (vr(dst, 4), off - 57344))

    for rt in range(8):
        xfrag(XB + rt * 4, rt, 0)
    for ks in range(14):
        cur = XB + (ks & 1) * 32
        nxt = XB + ((ks + 1) & 1) * 32
        if ks < 13 and ks != 6:
            for rt in range(8):
                xfrag(nxt + rt * 4, rt, ks + 1)
            vm.wait("w%d" % ks, "lgkmcnt(8)")
        else:
            vm.wait("w%d" % ks, "lgkmcnt(0)")
        q = []
        if ks + NPRE < 14:
            q.append(lambda ks=ks: wload(ks + NPRE))
        if ks >= 1:
            q.append(lambda ks=ks: wdload(2 * ks - 2))
            q.append(lambda ks=ks: wdload(2 * ks - 1))
        for rt in range(8):
            for mat in range(2):
                d = vr(ACC + (rt * 2 + mat) * 4, 4)
                a("%s %s, %s, %s, %s" % (MF, d, vr(W + (ks * 2 + mat) * 4, 4), vr(cur + rt * 4, 4), "0" if ks == 0 else d))
            if q and rt % 2 == 1:
                q.pop(0)()
        assert not q
        if ks == 6:
            vm.wait("dmaB")
            a("s_barrier")
            for rt in range(8):
                xfrag(nxt + rt * 4, rt, ks + 1)
    stamp(a)
    a("v_lshlrev_b32 v2, 3, v3")
    a("v_add_u32 v2, %d, v2" % LDS_ST)
    for rt in range(8):
        a("ds_read_b64 %s, v2 offset:%d" % (vr(XB + 2 * rt, 2), rt * 128))
    a("s_lshl_b32 s33, s22, 1")
    a("s_and_b32 s34, s3, 1")
    a("s_add_u32 s33, s33, s34")
    a("s_mul_i32 s33, s33, %d" % (4 * 56))
    a("s_lshr_b32 s34, s23, 1")
    a("s_add_u32 s33, s33, s34")
    a("s_lshl_b32 s33, s33, 10")
    a("s_add_u32 s33, s33, s82")
    a("s_lshr_b32 s34, s3, 1")
    a("s_lshl_b32 s34, s34, 13")
    a("s_add_u32 s34, s34, %d" % LDS_HX)
    a("s_and_b32 s35, s3, 1")
    a("s_lshl_b32 s38, s35, 3")
    a("s_add_u32 s38, s38, s34")
    a("v_add_u32 v2, s38, v5")
    a("s_lshl_b32 s38, s35, 12")
    a("s_add_u32 s38, s38, s34")
    a("v_add_u32 v6, s38, v5")
    a("v_mov_b32 v7, 0xbfb8aa3b")
    wdload(26)
    wdload(27)
    a("s_waitcnt lgkmcnt(0)")
    T = XB + 16
    for rt in range(8):
        mb, ri = XB + 2 * rt, XB + 2 * rt + 1
        g = ACC + rt * 8
        u = g + 4
        t = T + (rt & 1) * 8
        a("v_mul_f32 v%d, v%d, v7" % (t, ri))
        for r in range(4):
            a("v_fma_f32 v%d, -v%d, v%d, v%d" % (g + r, mb, CS + r, g + r))
        for r in range(4):
            a("v_fma_f32 v%d, -v%d, v%d, v%d" % (u + r, mb, CS + 4 + r, u + r))
        for r in range(4):
            a("v_mul_f32 v%d, v%d, v%d" % (g + r, g + r, t))
        for r in range(4):
            a("v_exp_f32 v%d, v%d" % (g + r, g + r))
        for r in range(4):
            a("v_mul_f32 v%d, v%d, v%d" % (u + r, u + r, ri))
        for r in range(4):
            a("v_add_f32 v%d, 1.0, v%d" % (g + r, g + r))
        for r in range(4):
            a("v_rcp_f32 v%d, v%d" % (g + r, g + r))
        for r in range(4):
            a("v_mul_f32 v%d, v%d, v%d" % (g + r, g + r, u + r))
        a("v_cvt_pk_bf16_f32 v%d, v%d, v%d" % (t + 4, g, g + 1))
        a("v_cvt_pk_bf16_f32 v%d, v%d, v%d" % (t + 5, g + 2, g + 3))
        a("ds_write_b64 v2, %s offset:%d" % (vr(t + 4, 2), rt * 1024))
    a("s_waitcnt lgkmcnt(0)")
    a("s_barrier")
    for i in range(4):
        a("ds_read_b128 %s, v6 offset:%d" % (vr(ACC + 4 * i, 4), i * 1024))
    for i in range(4):
        a("s_waitcnt lgkmcnt(%d)" % (3 - i))
        a("s_add_u32 s34, s33, %d" % (i * 56 * 1024))
        vm.issue("hout", "buffer_store_dwordx4 %s, v5, s[8:11], s34 offen%s" % (vr(ACC + 4 * i, 4), SC))
    a("s_add_u32 s49, s49, 4096")
    stamp(a)
    publish(a, vm, "hout", 49, "b")
    mstamp(a, 8)
    wait_flag(a, 51, 14, "b")
    stamp(a)
    tile_map(a)
    a("s_mul_i32 s27, s3, 7")
    a("s_mul_i32 s29, s22, 224")
    a("s_add_u32 s29, s29, s27")
    a("s_lshl_b32 s29, s29, 10")
    a("s_add_u32 s29, s29, s82")
    for c in range(4):
        a("s_add_u32 s%d, s29, %d" % (42 + c, c * 56 * 1024))
        a("s_add_u32 s%d, s29, %d" % (46 + c, c * 56 * 1024 + 4096)) if c < 3 else None
    a("s_add_u32 s39, s29, %d" % (3 * 56 * 1024 + 4096))
    ACC = 16
    HBUF = 80
    NST = 3

    def hissue(i):
        st = HBUF + (i % NST) * 16
        for c in range(4):
            sH = (42 + c) if i < 4 else ((46 + c) if c < 3 else 39)
            vm.issue("h%d" % i, "buffer_load_dwordx4 %s, v5, s[8:11], s%d offen offset:%d%s" % (vr(st + c * 4, 4), sH, (i % 4) * 1024, SC))

    for i in range(NST):
        hissue(i)
    a("s_lshl_b32 s30, s26, 10")
    a("s_add_u32 s30, s30, s80")
    vm.issue("res", "buffer_load_dwordx4 v[12:15], v5, s[8:11], s30 offen%s" % SC)
    for i in range(7):
        vm.wait("h%d" % i)
        st = HBUF + (i % NST) * 16
        for rt in range(4):
            for ct in range(4):
                d = vr(ACC + (rt * 4 + ct) * 4, 4)
                a("%s %s, %s, %s, %s" % (MF, d, vr(WD + (i * 4 + ct) * 4, 4), vr(st + rt * 4, 4), "0" if i == 0 else d))
        if i + NST < 7:
            hissue(i + NST)
    stamp(a)
    reduce_store(a, vm, ACC, RES, "kbC", OFF_X2, OFF_ST2, True)
    mstamp(a, 9)
    stamp_flush(a, 2, 6)
    a("s_cmp_lg_u32 s55, 0")
    a("s_cbranch_scc1 kb_done")
    a("s_add_u32 s50, s50, 8192")
    a("s_waitcnt vmcnt(0)")
    vm.issue("z", "s_nop 0")
    sv = _nst[0]
    publish(a, vm, "z", 50, "c")
    _nst[0] = sv
    a.label("kb_tail")
    a("s_cmp_lg_u32 s55, 0")
    a("s_cbranch_scc1 kb_done")
    a("s_add_u32 s97, s53, 8192")
    a("s_mov_b32 s52, 0x%x" % OFF_X2)
    a("s_mov_b32 s98, 0x%x" % OFF_ST2)
    a("s_mov_b32 s53, 0x%x" % (OFF_FLAG + 32768))
    a("s_mov_b32 s54, 0x%x" % (OFF_KV + 131072))
    a("s_mov_b32 s55, 1")
    a("s_mov_b32 s80, 0x%x" % (OFF_X1 + BLK))
    a("s_mov_b32 s81, 0x%x" % (OFF_ST1 + BLK))
    a("s_mov_b32 s82, 0x%x" % (OFF_H + BLK))
    a("s_mov_b32 s83, 0x%x" % (OFF_OF + BLK))
    a("s_branch k1_body")
    a.label("kb_done")
    a("s_endpgm")


def emit_file(a, dst):
    hdr = open("interleave_layers__linear_kernel_hedgehog__glu_gated_glu__prompt.s.ref").read().split("\n")
    head = [l for l in hdr if l.startswith(";") and "@launch" not in l and "Override launch" not in l and "grid=ceil" not in l]
    out = head[:]
    for (name, grid, block, lds, vg, sg) in kernels:
        kdefs[name] = (vg, sg, 0)
        launches.append((name, grid, block, lds))
    for (name, grid, block, lds) in launches:
        out.append("; @launch kernel=%s grid=(%d,1,1) block=(%d,1,1) lds=%d" % (name, grid, block, lds))
    out.append('.amdgcn_target "amdgcn-amd-amdhsa--gfx950"')
    out.append(".text")
    out.append(a.text())
    out.append('.section .rodata,"a"')
    for name, (vg, sg, ag) in kdefs.items():
        acc = (vg + 3) // 4 * 4
        out.append(".p2align 6")
        out.append(".amdhsa_kernel %s" % name)
        out.append("  .amdhsa_next_free_vgpr %d" % (acc + ag if ag else vg))
        out.append("  .amdhsa_next_free_sgpr %d" % (100 if STAMP else sg))
        out.append("  .amdhsa_accum_offset %d" % acc)
        out.append("  .amdhsa_group_segment_fixed_size 0")
        out.append("  .amdhsa_kernarg_size 88")
        out.append("  .amdhsa_user_sgpr_count 2")
        out.append("  .amdhsa_user_sgpr_kernarg_segment_ptr 1")
        out.append("  .amdhsa_system_sgpr_workgroup_id_x 1")
        out.append("  .amdhsa_float_denorm_mode_32 3")
        out.append(".end_amdhsa_kernel")
    open(dst, "w").write("\n".join(out) + "\n")
    print("wrote", dst, "ws total", WS_TOTAL)


def main():
    a = Asm()
    gen_prep(a)
    gen_k1(a)
    gen_kb(a)
    a.raw("code_end:")
    launches.append(("prep_kernel", NPREP, 256, 57344))
    launches.append(("megal0_kernel", 256, 512, 148 * 1024))
    dst = sys.argv[1] if len(sys.argv) > 1 else "interleave_layers__linear_kernel_hedgehog__glu_gated_glu__prompt.s"
    emit_file(a, dst)


if __name__ == "__main__":
    main()
```
